```python
import torch

def _softmax(x, axis=-1):
    return torch.softmax(x, dim=axis)

def _gelu(x):
    return torch.nn.functional.gelu(x, approximate='tanh')

def _silu(x):
    return torch.nn.functional.silu(x)

def _sigmoid(x):
    return torch.sigmoid(x)

def _layernorm(x, axis=-1, eps=1e-05):
    m = x.mean(dim=axis, keepdim=True)
    v = x.var(dim=axis, keepdim=True, unbiased=False)
    return (x - m) / torch.sqrt(v + eps)

def _scatter_add(tgt, idx, src, axis=0):
    return tgt.clone().index_add_(axis, idx, src)

def _segment_sum(src, seg, n):
    out = torch.zeros((n,) + src.shape[1:], dtype=src.dtype)
    return out.index_add_(0, seg, src)

def _pad(x, pw):
    flat = tuple((v for pair in reversed(pw) for v in pair))
    return torch.nn.functional.pad(x, flat)
kernel_name = 'sequential_preLN__ssm_conv_s4__mixer_gmlp__prompt'

def setup_inputs():

    _w = lambda a: (lambda t: t.to(torch.bfloat16) if t.is_floating_point() else t)(torch.as_tensor(a))

    def _A_setup():
        B, L, D, N = (1, 2048, 640, 192)
        A_re = -(lambda _x: torch.exp(torch.as_tensor(_x)))((lambda *s: torch.randn(*s, dtype=torch.bfloat16) * 3.2)(D, N))
        A_im = torch.pi * (lambda *s: torch.randn(*s, dtype=torch.bfloat16) * 0.05)(D, N)
        B_re = (lambda *s: torch.randn(*s, dtype=torch.bfloat16) * 0.1)(D, N)
        B_im = (lambda *s: torch.randn(*s, dtype=torch.bfloat16) * 0.05)(D, N)
        C_re = (lambda *s: torch.randn(*s, dtype=torch.bfloat16) * 0.05)(D, N)
        C_im = (lambda *s: torch.randn(*s, dtype=torch.bfloat16) * 0.05)(D, N)
        log_dt = (lambda *s: torch.randn(*s, dtype=torch.bfloat16) * 0.05)(D) * 0.5 - 4.0
        Dskip = (lambda *s: torch.randn(*s, dtype=torch.bfloat16) * 0.05)(D)
        return {'u': _w((lambda *s: torch.randn(*s, dtype=torch.bfloat16) * 0.05)(B, L, D)), 'A_re': _w(A_re), 'A_im': _w(A_im), 'B_re': _w(B_re), 'B_im': _w(B_im), 'C_re': _w(C_re), 'C_im': _w(C_im), 'log_dt': _w(log_dt), 'Dskip': _w(Dskip)}
    _A_in = _A_setup()

    def _B_setup():
        B, S, D, F = (1, 2048, 640, 1536)
        Fh = F // 2
        return {'x': _w((lambda *s: torch.randn(*s, dtype=torch.bfloat16) * 0.05)(B, S, D)), 'w_in': _w((lambda *s: torch.randn(*s, dtype=torch.bfloat16) * 0.4)(D, 2 * Fh)), 'w_sp': _w(0.01 * (lambda *s: torch.randn(*s, dtype=torch.bfloat16) * 0.4)(S, S)), 'b_sp': _w(1.0 + 0.01 * (lambda *s: torch.randn(*s, dtype=torch.bfloat16) * 0.05)(S)), 'w_out': _w((lambda *s: torch.randn(*s, dtype=torch.bfloat16) * 0.05)(Fh, D))}
    _B_in = _B_setup()
    return {'A_u': _A_in['u'], 'A_A_re': _A_in['A_re'], 'A_A_im': _A_in['A_im'], 'A_B_re': _A_in['B_re'], 'A_B_im': _A_in['B_im'], 'A_C_re': _A_in['C_re'], 'A_C_im': _A_in['C_im'], 'A_log_dt': _A_in['log_dt'], 'A_Dskip': _A_in['Dskip'], 'B_x': _B_in['x'], 'B_w_in': _B_in['w_in'], 'B_w_sp': _B_in['w_sp'], 'B_b_sp': _B_in['b_sp'], 'B_w_out': _B_in['w_out']}

def reference(A_u, A_A_re, A_A_im, A_B_re, A_B_im, A_C_re, A_C_im, A_log_dt, A_Dskip, B_x, B_w_in, B_w_sp, B_b_sp, B_w_out):

    def _A_ref(u, A_re, A_im, B_re, B_im, C_re, C_im, log_dt, Dskip):
        Bsz, L, D = u.shape
        dt = torch.exp(log_dt)[:, None]
        A = A_re + 1j * A_im
        Bc = B_re + 1j * B_im
        Cc = C_re + 1j * C_im
        logdA = dt * A
        dB = dt * Bc
        l = (lambda x, dt: x.to(dt))(torch.arange(L), A_re.dtype)
        P = torch.exp(logdA[:, :, None] * l[None, None, :])
        K = torch.einsum('dn,dnl,dn->dl', Cc, P, dB).real
        L2 = 2 * L
        Kp = _pad(K, ((0, 0), (0, L)))
        up = (lambda x, *d: x.permute(*d))(u, 0, 2, 1)
        up = _pad(up, ((0, 0), (0, 0), (0, L)))
        Kf = (lambda x, axes=(-2, -1): torch.fft.rfft2(x.float(), dim=axes))(Kp[:, None, :], axes=(-2, -1))
        Uf = (lambda x, axes=(-2, -1): torch.fft.rfft2(x.float(), dim=axes))(up[:, :, None, :], axes=(-2, -1))
        Yf = Uf * Kf[None, :, :, :]
        y = (lambda x, s, axes=(-2, -1): torch.fft.irfft2(x, s=s, dim=axes).to(torch.bfloat16))(Yf, (1, L2), axes=(-2, -1))[:, :, 0, :L]
        y = (lambda x, *d: x.permute(*d))(y, 0, 2, 1) + u * Dskip[None, None, :]
        return y

    def _B_ref(x, w_in, w_sp, b_sp, w_out):
        B, S, D = x.shape
        F = w_in.shape[-1]
        Fh = F // 2
        z = _gelu(torch.einsum('bsd,df->bsf', x, w_in))
        z1 = z[..., :Fh].clone()
        z2 = _layernorm(z[..., Fh:], axis=-1)
        g = torch.einsum('ts,bsf->btf', w_sp, z2) + b_sp[None, :, None]
        return torch.einsum('bsf,fd->bsd', z1 * g, w_out)
    x = A_u
    h = x + _A_ref(_layernorm(x, axis=-1), A_A_re, A_A_im, A_B_re, A_B_im, A_C_re, A_C_im, A_log_dt, A_Dskip)
    h2 = h + _B_ref(_layernorm(h, axis=-1), B_w_in, B_w_sp, B_b_sp, B_w_out)
    return h2
```

```python
import re

def _regs(tok):
    tok = tok.strip()
    neg = tok.lstrip('-')
    m = re.fullmatch(r'(?:abs\()?\|?([vas])(\d+)\|?\)?', neg)
    if m: return [(m.group(1), int(m.group(2)))]
    m = re.fullmatch(r'([vas])\[(\d+):(\d+)\]', neg)
    if m: return [(m.group(1), k) for k in range(int(m.group(2)), int(m.group(3)) + 1)]
    if neg in ('vcc', 'vcc_lo', 'vcc_hi'): return [('x', 'vcc')]
    if neg in ('exec', 'exec_lo', 'exec_hi'): return [('x', 'exec')]
    if neg == 'm0': return [('x', 'm0')]
    return []

def split_ops(s):
    out, depth, cur = [], 0, ''
    for ch in s:
        if ch in '[(': depth += 1
        if ch in '])': depth -= 1
        if ch == ',' and depth == 0:
            out.append(cur); cur = ''
        else: cur += ch
    if cur.strip(): out.append(cur)
    ops = [o.strip() for o in out]
    mods = ''
    if ops:
        parts = ops[-1].split(None, 1)
        ops[-1] = parts[0]
        mods = parts[1] if len(parts) > 1 else ''
    return ops, mods

TRANS = ('v_exp_f32', 'v_log_f32', 'v_rcp_f32', 'v_rsq_f32', 'v_sqrt_f32', 'v_sin_f32', 'v_cos_f32')
NODST_S = ('s_cmp', 's_waitcnt', 's_barrier', 's_nop', 's_branch', 's_cbranch', 's_sleep', 's_endpgm', 's_setprio', 's_bitcmp')

class I:
    __slots__ = ('text', 'mn', 'rd', 'wr', 'kind', 'tag', 'srcC', 'srcAB', 'wide', 'dpp', 'sdata', 'after')
    def __init__(self, text, tag=None):
        self.text = text; self.tag = tag; self.after = None
        t = text.split(';')[0].strip()
        p = t.split(None, 1)
        mn = self.mn = p[0]
        ops, mods = split_ops(p[1]) if len(p) > 1 else ([], '')
        R = [_regs(o) for o in ops]
        flat = lambda l: [r for x in l for r in x]
        self.srcC = []; self.srcAB = []; self.wide = False; self.sdata = []
        self.dpp = ('_dpp' in mn) or any(k in mods for k in ('quad_perm', 'row_shl', 'row_shr', 'row_ror', 'row_mirror', 'row_half_mirror', 'row_bcast', 'row_newbcast', 'wave_'))
        if mn.startswith('v_mfma'):
            self.kind = 'mfma'; self.wr = R[0]; self.rd = flat(R[1:]); self.srcC = R[3]; self.srcAB = R[1] + R[2]
        elif mn.startswith('v_'):
            self.kind = 'valu'
            if mn.startswith(('v_swap', 'v_permlane')):
                self.wr = flat(R[:2]); self.rd = flat(R)
            elif mn.startswith(('v_add_co', 'v_sub_co', 'v_addc_co', 'v_subb_co')):
                self.wr = flat(R[:2]); self.rd = flat(R[2:])
            elif mn == 'v_nop':
                self.wr = []; self.rd = []
            else:
                self.wr = R[0]; self.rd = flat(R[1:])
                if mn.startswith(('v_fmac', 'v_dot2c', 'v_pk_fmac', 'v_writelane')) or self.dpp or 'sdwa' in mn:
                    self.rd = self.rd + R[0]
        elif mn.startswith('ds_'):
            self.kind = 'ds'
            if mn.startswith(('ds_read', 'ds_bpermute', 'ds_permute', 'ds_swizzle')):
                self.wr = R[0]; self.rd = flat(R[1:])
            elif mn.startswith('ds_write'):
                self.wr = []; self.rd = flat(R)
                if 'addtid' in mn: self.rd = self.rd + [('x', 'm0')]
            else: raise ValueError(text)
        elif mn.startswith(('buffer_', 'global_')):
            self.kind = 'vm'
            islds = bool(re.search(r'\blds\b', mods)) or '_lds_' in mn
            if 'load' in mn and not islds:
                self.wr = R[0]; self.rd = flat(R[1:])
            elif 'load' in mn:
                self.wr = []; self.rd = flat(R) + [('x', 'm0')]
            elif 'store' in mn:
                self.wr = []; self.rd = flat(R)
                if 'x3' in mn or 'x4' in mn:
                    self.wide = True
                    self.sdata = R[0] if mn.startswith('buffer_') else R[1]
            else: raise ValueError(text)
        elif mn.startswith('s_'):
            if mn.startswith(('s_load', 's_memtime', 's_memrealtime')):
                self.kind = 'smem'; self.wr = R[0]; self.rd = flat(R[1:])
            else:
                self.kind = 'salu'
                if mn.startswith(NODST_S): self.wr = []; self.rd = flat(R)
                else:
                    self.wr = R[0]; self.rd = flat(R[1:])
                    if 'saveexec' in mn: self.wr = self.wr + [('x', 'exec')]
        else:
            raise ValueError('unknown instr: ' + text)

class Asm:
    def __init__(self):
        self.items = []
    def __call__(self, text, tag=None):
        for line in text.strip().split('\n'):
            line = line.strip()
            if not line or line.startswith(';'): continue
            if line.endswith(':'): self.items.append(('label', line[:-1]))
            else: self.items.append(I(line, tag))
    def branch_label(self, text, label):
        i = I(text); i.after = label; self.items.append(i)
    def label(self, n): self.items.append(('label', n))
    def raw(self, t): self.items.append(('raw', t))
    def need(self, *toks):
        regs = [r for t in toks for r in _regs(t)]
        assert regs, toks
        self.items.append(('need', regs))
    def waittag(self, tag): self.items.append(('waittag', tag))
    def reset(self):
        self.items.append(('reset',))
    def save(self, name): self.items.append(('save', name))
    def restore(self, name): self.items.append(('restore', name))
    def add(self, it): self.items.append(it)
    def capture(self, fn):
        old = self.items; self.items = []
        fn(); got = self.items; self.items = old
        return got
    def weave(self, main, fill, start=0, end=None):
        n = len(main) if end is None else end
        span = max(1, n - start)
        k = 0
        for idx, it in enumerate(main):
            self.items.append(it)
            if idx >= start:
                want = min(len(fill), ((idx - start + 1) * len(fill) + span - 1) // span) if idx < n else len(fill)
                while k < want:
                    self.items.append(fill[k]); k += 1
        while k < len(fill):
            self.items.append(fill[k]); k += 1

    def finish(self):
        out = []
        vm, lg = [], []
        hist = []
        saved = {}
        self.stats = dict(waits=0, nops=0, insts=0)
        def emit(ins, states=1):
            out.append('    ' + ins.text); hist.append((ins, states)); self.stats['insts'] += 1
            if len(hist) > 24: hist.pop(0)
        def do_wait(nv, nl):
            nonlocal vm, lg
            s = []
            if nv is not None:
                nv = min(nv, 63); s.append(f'vmcnt({nv})'); vm = vm[len(vm) - nv:] if nv < len(vm) else vm
            if nl is not None:
                if any(e[2] for e in lg): nl = 0
                nl = min(nl, 15); s.append(f'lgkmcnt({nl})'); lg = lg[len(lg) - nl:] if nl < len(lg) else lg
            emit(I('s_waitcnt ' + ' '.join(s))); self.stats['waits'] += 1
        def wait_regs(regs, skip_same=None):
            regs = set(regs); nv = nl = None
            for q, name in ((vm, 'vm'), (lg, 'ds')):
                rr = regs if skip_same is None or skip_same[0] != name else set(skip_same[1])
                for p in range(len(q) - 1, -1, -1):
                    if q[p][0] & rr:
                        if name == 'vm': nv = len(q) - 1 - p
                        else: nl = len(q) - 1 - p
                        break
            if nv is not None or nl is not None: do_wait(nv, nl)
        def need_states(ins):
            need = 0; d = 0
            rd, wr = set(ins.rd), set(ins.wr)
            for prev, st in reversed(hist):
                pw = set(prev.wr); req = 0
                if prev.kind == 'valu':
                    vw = {r for r in pw if r[0] in 'va'}; sw = {r for r in pw if r[0] in 'sx'}
                    dl = prev.mn.startswith('v_dot')
                    if ins.kind == 'mfma' and vw & rd: req = max(req, 3 if dl else 2)
                    if ins.kind == 'valu':
                        if ins.dpp and vw & rd: req = max(req, 2)
                        if ins.mn.startswith('v_permlane') and vw & rd: req = max(req, 2)
                        if ins.mn.startswith(('v_readlane', 'v_readfirstlane')) and vw & rd: req = max(req, 1)
                        if prev.mn.startswith(TRANS) and vw & rd: req = max(req, 1)
                        if sw & rd: req = max(req, 4 if ins.mn.startswith(('v_readlane', 'v_writelane')) else 2)
                        if ('sdwa' in prev.mn) and vw & (rd | wr): req = max(req, 1)
                    if dl and vw & (rd | wr):
                        same = ins.mn == prev.mn
                        if not same: req = max(req, 3)
                        else:
                            ops, _ = split_ops(ins.text.split(None, 1)[1])
                            ab = set(_regs(ops[1]) + _regs(ops[2]))
                            if vw & ab: req = max(req, 3)
                    if prev.mn.startswith(TRANS) and ins.kind in ('ds', 'vm') and vw & rd: req = max(req, 1)
                    if ins.kind == 'vm' and sw & rd: req = max(req, 5)
                    if ins.kind == 'salu' and sw & rd: req = max(req, 1)
                if prev.kind == 'mfma':
                    p8 = '32x32' in prev.mn
                    if ins.kind == 'mfma':
                        if pw & set(ins.srcAB): req = max(req, 12 if p8 else 8)
                        if pw & set(ins.srcC) and not (list(prev.wr) == list(ins.srcC) and prev.mn == ins.mn): req = max(req, 10 if p8 else 6)
                        if pw & wr and not (pw & set(ins.srcC)): req = max(req, 12 if p8 else 8)
                    elif pw & (rd | wr): req = max(req, 12 if p8 else 8)
                    if ins.kind in ('valu', 'ds', 'vm') and set(prev.srcC) & wr: req = max(req, 7 if p8 else 3)
                if prev.kind == 'salu' and ('x', 'm0') in pw and ins.kind in ('vm', 'ds') and ('x', 'm0') in rd: req = max(req, 1)
                if prev.kind == 'vm' and prev.wide and set(prev.sdata) & wr: req = max(req, 2)
                if req - d > need: need = req - d
                d += st
                if d >= 20: break
            return need
        for it in self.items:
            if isinstance(it, tuple):
                k = it[0]
                if k == 'label': out.append(it[1] + ':')
                elif k == 'raw': out.append(it[1])
                elif k == 'need': wait_regs(it[1])
                elif k == 'waittag':
                    nv = nl = None
                    for p in range(len(vm) - 1, -1, -1):
                        if vm[p][1] == it[1]: nv = len(vm) - 1 - p; break
                    for p in range(len(lg) - 1, -1, -1):
                        if lg[p][1] == it[1]: nl = len(lg) - 1 - p; break
                    if nv is not None or nl is not None: do_wait(nv, nl)
                elif k == 'reset':
                    vm, lg = [], []; hist.clear()
                elif k == 'save': saved[it[1]] = (list(vm), list(lg))
                elif k == 'restore':
                    vm, lg = list(saved[it[1]][0]), list(saved[it[1]][1]); hist.clear()
                continue
            ins = it
            if ins.mn == 's_waitcnt':
                m = re.search(r'vmcnt\((\d+)\)', ins.text)
                if m:
                    n = int(m.group(1)); vm = vm[len(vm) - n:] if n < len(vm) else vm
                m = re.search(r'lgkmcnt\((\d+)\)', ins.text)
                if m:
                    n = int(m.group(1)); lg = lg[len(lg) - n:] if n < len(lg) else lg
                emit(ins); continue
            if ins.kind in ('vm', 'ds'):
                wait_regs(ins.rd + ins.wr, skip_same=(ins.kind, ins.rd))
            else:
                wait_regs(ins.rd + ins.wr)
            n = need_states(ins)
            while n > 0:
                c = min(n, 16); emit(I(f's_nop {c-1}'), c); self.stats['nops'] += 1; n -= c
            st = 1
            if ins.mn == 's_nop': st = int(ins.text.split()[1], 0) + 1
            emit(ins, st)
            if ins.after: out.append(ins.after + ':')
            if ins.kind == 'vm':
                vm.append((set(ins.wr), ins.tag, False))
                assert len(vm) <= 63, 'too many outstanding vm ops at ' + ins.text
            elif ins.kind == 'ds': lg.append((set(ins.wr), ins.tag, False))
            elif ins.kind == 'smem': lg.append((set(ins.wr), ins.tag, True))
        return '\n'.join(out) + '\n'
```

```python
from gen import *

def rest(g):
    A = g.A
    if g.stop <= 1:
        g.finish_early(); return
    HA = 4
    CS2 = 84
    VH, VZ, VBS = 90, 91, 92
    VB = 94
    T0 = 102
    ACC2, SUM, SQ, ON, ACC1, CS1 = 112, 136, 140, 144, 148, 172
    TT = 196
    BR = 208; NBR = 12
    VWI = g.VWI
    A(f'''v_and_b32 v{T0}, 15, v1
    v_lshrrev_b32 v{T0+1}, 4, v1
    v_lshlrev_b32 v{VH}, 3, v{T0}
    v_lshl_add_u32 v{VH}, v{T0+1}, 14, v{VH}
    s_lshl_b32 s{sT0}, s{sI}, 2
    s_add_u32 s{sT2}, s{sT0}, s{sW}
    s_lshl_b32 s{sB0}, s{sT2}, 7
    s_add_u32 s{sB0}, s{sB0}, {H}''')
    def hloads(grp):
        for ks in range(4 * grp, 4 * grp + 4):
            for hh in range(2):
                A(f's_add_u32 s{sRL}, s{sB0}, {(8*ks + 4*hh) * 16384}')
                A(f'buffer_load_dwordx2 {vp(HA + 4*ks + 2*hh)}, v{VH}, {srd(rWS)}, s{sRL} offen sc1')
    A('s_barrier')
    A(f's_cmp_ge_u32 s{sIDX}, 12\ns_cbranch_scc1 L_ok_pre')
    def pre(): A(f'buffer_load_dwordx2 {vp(HA)}, v{VH}, {srd(rWS)}, s{sB0} offen sc1')
    pre()
    g.check('pre', [HA, HA + 1], HA + 2, pre, sleep=8)
    g.stamp(8)
    hloads(0); hloads(1); hloads(2)
    A(f'''s_mul_i32 s{sT0}, s{sXC}, 3072
    s_and_b32 s{sT1}, s{sJ}, 3
    s_mul_i32 s{sT1}, s{sT1}, 384
    s_add_u32 s{sT0}, s{sT0}, s{sT1}
    s_add_u32 s{sB1}, s{sT0}, {CS}
    v_lshlrev_b32 v{VZ}, 2, v{T0}
    v_lshlrev_b32 v{T0+2}, 4, v{T0+1}
    s_lshl_b32 s{sT0}, s{sT2}, 5
    v_lshl_add_u32 v{T0+3}, v{T0}, 1, s{sT0}''')
    def smalls():
        for c in range(6): A(f'buffer_load_dword v{CS2+c}, v{VZ}, {srd(rWS)}, s{sB1} offen offset:{1536 + 64*c} sc1')
        for c in range(6): A(f'buffer_load_dwordx4 {vq(CS1+4*c)}, v{T0+2}, {srd(rWS)}, s{sB1} offen offset:{64*c} sc1')
        A(f'global_load_ushort v{VBS}, v{T0+3}, {sp(pBsp)}')
    A(f'''v_lshrrev_b32 v{TT}, 2, v1
    v_mul_u32_u24 v{TT}, 192, v{TT}
    v_and_b32 v{TT+1}, 3, v1
    v_lshl_add_u32 v{TT}, v{TT+1}, 3, v{TT}
    v_and_b32 v{TT+1}, 1, v{T0+1}
    v_lshlrev_b32 v{TT+1}, 5, v{TT+1}
    v_add_u32 v{VB}, v{TT}, v{TT+1}
    v_xor_b32 v{TT+1}, 32, v{TT+1}
    v_add_u32 v{VB+1}, v{TT}, v{TT+1}''')
    for a in range(1, 4):
        A(f'v_add_u32 v{VB+2*a}, {a*AREA}, v{VB}\nv_add_u32 v{VB+2*a+1}, {a*AREA}, v{VB+1}')
    for k in range(4): A(f'v_mov_b32 v{ON+k}, s{sONES}')
    def slot2(ks): return ks // 5, (ks % 5) * 6144
    def slot1(ks): return (ks, 30720) if ks < 4 else slot2(ks - 4)
    def bread(n, slot):
        ks, c = divmod(n, 6); a, off = slot(ks); r = BR + 4 * (n % NBR)
        for hh in range(2):
            A(f'ds_read_b64_tr_b16 {vp(r + 2*hh)}, v{VB + 2*a + (c & 1)} offset:{off + hh*3072 + (c >> 1)*64}')
    def z1dma(b):
        if b == 0: A(f's_add_u32 s{sT1}, s{sLB}, 30720')
        else:
            A(f'''s_add_u32 s{sT0}, s{sW}, {4*b - 4}
            s_mul_i32 s{sT1}, s{sT0}, 52429
            s_lshr_b32 s{sT1}, s{sT1}, 18
            s_mul_i32 s{sT1}, s{sT1}, 10240
            s_mul_i32 s{sT0}, s{sT0}, 6144
            s_add_u32 s{sT1}, s{sT1}, s{sT0}''')
        for u in range(2):
            A(f's_add_u32 m0, s{sT1}, {u*3072}')
            A(f's_add_u32 s{sOFF}, s{sT3}, {(4*b*32 + u*16) * 3072}')
            for r3 in range(3):
                A(f'buffer_load_dwordx4 v{VWI+r3}, {srd(rWIN)}, s{sOFF} offen offset:{1024*r3} lds', tag='wz1')
    A(f'''s_mul_i32 s{sT3}, s{sW}, {32*3072}
    s_mul_i32 s{sT0}, s{sJ}, 192
    s_add_u32 s{sT3}, s{sT3}, s{sT0}''')
    LEAD = 7
    def gemm1(part, grp, extra):
        slot = slot2 if part else slot1; acc = ACC2 if part else ACC1
        def main():
            for ks in range(4 * grp, 4 * grp + 4):
                h = vq(HA + 4 * ks)
                for c in range(6):
                    n = 6 * ks + c; b = vq(BR + 4 * (n % NBR))
                    if c % 2 == 0: A.need(b, vq(BR + 4 * ((n + 1) % NBR)))
                    cc = '0' if ks == 0 else vq(acc + 4*c)
                    A(f'v_mfma_f32_16x16x32_bf16 {vq(acc+4*c)}, {h if part else b}, {b if part else h}, {cc}')
                    if n + LEAD < 120: bread(n + LEAD, slot)
                    if part and c == 1: A(f'v_mfma_f32_16x16x32_bf16 {vq(SUM)}, {h}, {vq(ON)}, {"0" if ks == 0 else vq(SUM)}')
                    if part and c == 4: A(f'v_mfma_f32_16x16x32_bf16 {vq(SQ)}, {h}, {h}, {"0" if ks == 0 else vq(SQ)}')
        m = A.capture(main); f = A.capture(extra)
        A.weave(m, f)
    for n in range(LEAD): bread(n, slot2)
    def hchk(grp, last):
        g.check(f'h{grp}', range(HA + 16*grp, HA + 16*grp + 16), T0, lambda: [hloads(k) for k in range(grp, last + 1)], sleep=4 if grp == 0 else 1)
    hchk(0, 2)
    g.stamp(9)
    gemm1(1, 0, lambda: (hloads(3), hchk(1, 3)))
    gemm1(1, 1, lambda: (hloads(4), hchk(2, 4)))
    A('s_barrier')
    gemm1(1, 2, lambda: (smalls(), z1dma(0), hchk(3, 4)))
    gemm1(1, 3, lambda: (z1dma(1), z1dma(2), hchk(4, 4)))
    A('s_barrier')
    gemm1(1, 4, lambda: z1dma(3))
    z1dma(4)
    g.stamp(10)
    R4, M4 = TT, TT + 4
    R1, M1 = TT + 8, TT + 9
    A(f'''v_and_b32 v{T0}, 3, v1
    v_cmp_eq_u32 vcc, 1, v{T0}
    v_cmp_eq_u32 {sp(sC)}, 2, v{T0}
    v_cmp_eq_u32 {sp(sC+2)}, 3, v{T0}
    v_and_b32 v{T0}, 15, v1
    v_lshrrev_b32 v{T0+1}, 2, v{T0}
    v_lshl_add_u32 v{T0}, v{T0+1}, 4, v{T0}
    v_lshlrev_b32 v{T0}, 2, v{T0}
    v_lshrrev_b32 v{T0+1}, 4, v1
    v_mul_u32_u24 v{T0+1}, 80, v{T0+1}
    v_cndmask_b32 v{T0+2}, v{SUM}, v{SUM+1}, vcc
    v_cndmask_b32 v{T0+3}, v{SQ}, v{SQ+1}, vcc
    v_cndmask_b32 v{T0+2}, v{T0+2}, v{SUM+2}, {sp(sC)}
    v_cndmask_b32 v{T0+3}, v{T0+3}, v{SQ+2}, {sp(sC)}
    v_cndmask_b32 v{T0+2}, v{T0+2}, v{SUM+3}, {sp(sC+2)}
    v_cndmask_b32 v{T0+3}, v{T0+3}, v{SQ+3}, {sp(sC+2)}
    v_mul_f32 v{T0+2}, {f32(-1/640)}, v{T0+2}
    v_mul_f32 v{T0+3}, {f32(1/640)}, v{T0+3}
    v_fma_f32 v{T0+3}, -v{T0+2}, v{T0+2}, v{T0+3}
    v_max_f32 v{T0+3}, 0, v{T0+3}
    v_add_f32 v{T0+3}, {f32(1e-5)}, v{T0+3}
    v_rsq_f32 v{T0+3}, v{T0+3}''')
    for i in range(4): A(f'ds_bpermute_b32 v{R4+i}, v{T0+1}, v{T0+3} offset:{4*i}')
    A(f'ds_bpermute_b32 v{R1}, v{T0}, v{T0+3}\nds_bpermute_b32 v{M1}, v{T0}, v{T0+2}')
    for i in range(4): A(f'v_mul_f32 v{M4+i}, {f32(-1/640)}, v{SUM+i}')
    c0 = 0.7978845608028654; l2e = math.log2(math.e)
    A(f's_mov_b32 s{sC+4}, {f32(-2*c0*l2e*0.044715)}\ns_mov_b32 s{sC+5}, {f32(-2*c0*l2e*0.044715)}')
    KP = T0
    def gelu(acc, tmp):
        for k in range(0, 24, 2): A(f'v_pk_mul_f32 {vp(tmp+k)}, {vp(acc+k)}, {vp(acc+k)}')
        for k in range(0, 24, 2): A(f'v_pk_fma_f32 {vp(tmp+k)}, {vp(tmp+k)}, {sp(sC+4)}, {vp(KP)} op_sel_hi:[1,1,0]')
        for k in range(0, 24, 2): A(f'v_pk_mul_f32 {vp(tmp+k)}, {vp(tmp+k)}, {vp(acc+k)}')
        for k in range(24): A(f'v_exp_f32 v{tmp+k}, v{tmp+k}')
        for k in range(0, 24, 2): A(f'v_pk_add_f32 {vp(tmp+k)}, {vp(tmp+k)}, 1.0 op_sel_hi:[1,0]')
        for k in range(24): A(f'v_rcp_f32 v{tmp+k}, v{tmp+k}')
        for k in range(0, 24, 2): A(f'v_pk_mul_f32 {vp(acc+k)}, {vp(acc+k)}, {vp(tmp+k)}')
    for c in range(6):
        cs = CS2 + (c & ~1); sel = c & 1
        for h in range(2):
            A(f'v_pk_fma_f32 {vp(ACC2+4*c+2*h)}, {vp(M4+2*h)}, {vp(cs)}, {vp(ACC2+4*c+2*h)} op_sel:[0,{sel},0] op_sel_hi:[1,{sel},1]')
    A(f'v_mov_b32 v{KP}, {f32(-2*c0*l2e)}')
    for c in range(6):
        for h in range(2): A(f'v_pk_mul_f32 {vp(ACC2+4*c+2*h)}, {vp(ACC2+4*c+2*h)}, {vp(R4+2*h)}')
    gelu(ACC2, BR)
    S1, S2 = SUM, SQ
    for h in range(2):
        A(f'v_pk_add_f32 {vp(S1+2*h)}, {vp(ACC2+2*h)}, {vp(ACC2+4+2*h)}\nv_pk_mul_f32 {vp(S2+2*h)}, {vp(ACC2+2*h)}, {vp(ACC2+2*h)}')
    for c in range(1, 6):
        for h in range(2):
            if c > 1: A(f'v_pk_add_f32 {vp(S1+2*h)}, {vp(S1+2*h)}, {vp(ACC2+4*c+2*h)}')
            A(f'v_pk_fma_f32 {vp(S2+2*h)}, {vp(ACC2+4*c+2*h)}, {vp(ACC2+4*c+2*h)}, {vp(S2+2*h)}')
    X4, Y4 = BR, BR + 4
    A(f's_mov_b32 vcc_lo, 0xaaaaaaaa\ns_mov_b32 vcc_hi, 0xaaaaaaaa')
    for i in range(4): A(f'v_cndmask_b32 v{Y4+i}, v{S2+i}, v{S1+i}, vcc')
    for i in range(4): A(f'v_cndmask_b32 v{X4+i}, v{S1+i}, v{S2+i}, vcc')
    for i in range(4): A(f'v_add_f32_dpp v{X4+i}, v{Y4+i}, v{X4+i} quad_perm:[1,0,3,2] row_mask:0xf bank_mask:0xf')
    for ror in (2, 4, 8):
        for i in range(4): A(f'v_add_f32_dpp v{X4+i}, v{X4+i}, v{X4+i} row_ror:{ror} row_mask:0xf bank_mask:0xf')
    A(f'''v_lshrrev_b32 v{T0+2}, 4, v1
    v_and_b32 v{T0+3}, 1, v1
    v_lshlrev_b32 v{T0+3}, 4, v{T0+3}
    v_lshl_add_u32 v{T0+2}, v{T0+2}, 5, v{T0+3}
    v_bfe_u32 v{T0+3}, v1, 1, 3
    v_lshl_add_u32 v{VZ}, v{T0+3}, 7, v{T0+2}
    s_lshl_b32 s{sB1}, s{sT2}, 10
    s_add_u32 s{sB1}, s{sB1}, {ZST}
    s_lshl_b32 s{sT0}, s{sJ}, 7
    s_add_u32 s{sT0}, s{sT0}, s{sB1}
    s_mov_b32 exec_lo, 0x00030003
    s_mov_b32 exec_hi, 0x00030003
    buffer_store_dwordx4 {vq(X4)}, v{T0+2}, {srd(rWS)}, s{sT0} offen sc1
    s_mov_b64 exec, -1''')
    g.stamp(11)
    A.waittag('wz1')
    A('s_barrier')
    for n in range(LEAD): bread(n, slot1)
    ZS = SUM
    def zsload(): A(f'buffer_load_dwordx4 {vq(ZS)}, v{VZ}, {srd(rWS)}, s{sB1} offen sc1')
    for grp in range(5):
        gemm1(0, grp, zsload if grp == 3 else (lambda: None))
    VWO = BR + 40
    for r5 in range(5):
        A(f'''v_add_u32 v{T0+1}, {64*r5}, v1
        v_mul_u32_u24 v{T0+2}, 6554, v{T0+1}
        v_lshrrev_b32 v{T0+2}, 16, v{T0+2}
        v_mul_u32_u24 v{T0+3}, 1120, v{T0+2}
        v_lshl_add_u32 v{CS2+r5}, v{T0+1}, 4, v{T0+3}''')
        if 0 < r5 < 4: A(f'v_subrev_u32 v{CS2+r5}, {1024*r5}, v{CS2+r5}')
    VWO = CS2
    g.check('zs', range(ZS, ZS + 4), T0 + 1, zsload, sleep=1)
    g.stamp(12)
    for ror in (2, 4, 8):
        for i in range(4): A(f'v_add_f32_dpp v{ZS+i}, v{ZS+i}, v{ZS+i} row_ror:{ror} row_mask:0xf bank_mask:0xf')
    A(f'v_mov_b32 v{T0+1}, {f32(1/768)}')
    for i in range(4): A(f'v_mul_f32_dpp v{M4+i}, v{ZS+i}, v{T0+1} quad_perm:[0,0,2,2] row_mask:0xf bank_mask:0xf')
    for i in range(4): A(f'v_mul_f32_dpp v{R4+i}, v{ZS+i}, v{T0+1} quad_perm:[1,1,3,3] row_mask:0xf bank_mask:0xf')
    for h in range(2): A(f'v_pk_fma_f32 {vp(R4+2*h)}, {vp(M4+2*h)}, {vp(M4+2*h)}, {vp(R4+2*h)} neg_lo:[1,0,0] neg_hi:[1,0,0]')
    for i in range(4): A(f'v_max_f32 v{R4+i}, 0, v{R4+i}')
    for i in range(4): A(f'v_add_f32 v{R4+i}, {f32(1e-5)}, v{R4+i}')
    for i in range(4): A(f'v_rsq_f32 v{R4+i}, v{R4+i}')
    A(f'''v_and_b32 v{T0+1}, 15, v1
    v_bfe_u32 v{T0+2}, v1, 4, 1
    v_lshlrev_b32 v{T0+2}, 10, v{T0+2}
    v_lshl_add_u32 v{T0+1}, v{T0+1}, 4, v{T0+2}
    v_lshrrev_b32 v{T0+2}, 5, v1
    v_lshl_add_u32 v{T0+1}, v{T0+2}, 8, v{T0+1}
    s_mul_i32 s{sB2}, s{sJ}, 393216
    s_add_u32 s{sB2}, s{sB2}, {Z2N}
    s_lshr_b32 s{sT0}, s{sT2}, 1
    s_lshl_b32 s{sT0}, s{sT0}, 11
    s_and_b32 s{sT1}, s{sW}, 1
    s_lshl_b32 s{sT1}, s{sT1}, 9
    s_add_u32 s{sT0}, s{sT0}, s{sT1}
    s_add_u32 s{sOFF}, s{sT0}, s{sB2}''')
    for h in range(2): A(f'v_pk_mul_f32 {vp(M4+2*h)}, {vp(M4+2*h)}, {vp(R4+2*h)} neg_lo:[1,0] neg_hi:[1,0]')
    for p in range(3):
        o = BR + 4 * p
        for k in range(4): A(f'v_pk_fma_f32 {vp(ACC2+8*p+2*k)}, {vp(ACC2+8*p+2*k)}, {vp(R4+2*(k&1))}, {vp(M4+2*(k&1))}')
        for k in range(4): A(f'v_cvt_pk_bf16_f32 v{o+k}, v{ACC2+8*p+2*k}, v{ACC2+8*p+2*k+1}')
    for p in range(3):
        o = BR + 4 * p
        A(f'v_permlane16_swap_b32 v{o}, v{o+2}\nv_permlane16_swap_b32 v{o+1}, v{o+3}')
        A(f'buffer_store_dwordx4 {vq(o)}, v{T0+1}, {srd(rWS)}, s{sOFF} offen sc1', tag='z2st')
        if p < 2: A(f's_add_u32 s{sOFF}, s{sOFF}, 131072')
    g.stamp(13)
    A('s_barrier')
    A(f'''s_mul_i32 s{sT3}, s{sW}, {6*32*1280}
    s_mul_i32 s{sT0}, s{sJ3}, 160
    s_add_u32 s{sT3}, s{sT3}, s{sT0}
    s_mul_i32 s{sT1}, s{sW}, {6*5120}''')
    def wodma():
        for k in range(6):
            A(f's_add_u32 m0, s{sT1}, {k*5120}\ns_add_u32 s{sOFF}, s{sT3}, {k*32*1280}')
            for r5 in range(4): A(f'buffer_load_dwordx4 v{VWO+r5}, {srd(rWOUT)}, s{sOFF} offen offset:{1024*r5} lds', tag='wo')
            A(f's_add_u32 m0, s{sT1}, {k*5120 + 4096}')
            A(f'buffer_load_dwordx4 v{VWO+4}, {srd(rWOUT)}, s{sOFF} offen lds', tag='wo')
    def z1epi():
        for k in range(0, 24, 2): A(f'v_pk_fma_f32 {vp(ACC1+k)}, {vp(CS1+k)}, {vp(R1)}, {vp(ACC1+k)} op_sel:[0,1,0] op_sel_hi:[1,1,1]')
        for k in range(0, 24, 2): A(f'v_pk_mul_f32 {vp(ACC1+k)}, {vp(ACC1+k)}, {vp(R1)} op_sel_hi:[1,0]')
        gelu(ACC1, BR + 16)
    A.weave(A.capture(z1epi), A.capture(wodma))
    if g.dump:
        A(f'''v_lshlrev_b32 v{T0}, 4, v1
        s_lshl_b32 s{sT0}, s2, 2
        s_add_u32 s{sT0}, s{sT0}, s{sW}
        s_mul_i32 s{sT0}, s{sT0}, 6144
        s_add_u32 s{sT0}, s{sT0}, {DBG}''')
        for c in range(6):
            A(f'buffer_store_dwordx4 {vq(ACC1+4*c)}, v{T0}, {srd(rWS)}, s{sT0} offen\ns_add_u32 s{sT0}, s{sT0}, 1024')
    if g.stop <= 2:
        A('s_waitcnt vmcnt(0)'); g.finish_early(); return

    RING, NG = 4, 5
    ACC = (176, 208); RT = 112
    VL, VRW, VRR, BS = 94, 95, 98, 100
    RB = 122880
    A(f'''v_lshlrev_b32 v{VL}, 4, v1
    s_lshl_b32 s{sT0}, s{sW}, 15
    s_add_u32 s{sB2}, s{sB2}, s{sT0}
    v_lshlrev_b32 v{BS}, 16, v{VBS}''')
    for r in range(1, 4):
        A(f'''s_add_u32 s{sT0}, s{sW}, {r}
        s_and_b32 s{sT0}, s{sT0}, 3
        s_mul_i32 s{sT0}, s{sT0}, 6144
        s_add_u32 s{sT0}, s{sT0}, {RB + (r-1)*2048}
        v_add_u32 v{VRW+r-1}, s{sT0}, v{VL}''')
    A(f'''s_mul_i32 s{sT0}, s{sW}, 6144
    s_add_u32 s{sT0}, s{sT0}, {RB}
    v_add_u32 v{VRR}, s{sT0}, v{VL}
    s_mul_i32 s{sB1}, s{sT2}, 24576
    s_mul_i32 s{sT0}, s{sJ}, 3072
    s_add_u32 s{sB1}, s{sB1}, s{sT0}
    s_add_u32 s{sB1}, s{sB1}, {P}''')
    A.waittag('z2st')
    def zl(G):
        if G >= 24: return
        p, q = divmod(G, 8)
        A(f's_add_u32 s{sRL}, s{sB2}, {p*131072 + q*4096}')
        for k in range(4): A(f'buffer_load_dwordx4 {vq(RING + 16*(G % NG) + 4*k)}, v{VL}, {srd(rWS)}, s{sRL} offen offset:{1024*k} sc1')
    def zchk(G, last):
        if G >= 24: return
        g.check(f'z{G}', range(RING + 16*(G % NG), RING + 16*(G % NG) + 16), T0, lambda: [zl(k) for k in range(G, last + 1)], sleep=1)
    def red_w(p):
        a = ACC[p & 1]
        for r in range(1, 4):
            for c in range(2): A(f'ds_write_b128 v{VRW+r-1}, {vq(a + 8*r + 4*c)} offset:{1024*c}')
    def red_r(p):
        A('s_waitcnt lgkmcnt(0)\ns_barrier')
        for k in range(6): A(f'ds_read_b128 {vq(RT+4*k)}, v{VRR} offset:{1024*k}')
    def red_e(p):
        a = ACC[p & 1]
        for k in range(0, 8, 2): A(f'v_pk_add_f32 {vp(a+k)}, {vp(a+k)}, {vp(BS)} op_sel_hi:[1,0]')
        for r in range(3):
            for k in range(0, 8, 2): A(f'v_pk_add_f32 {vp(a+k)}, {vp(a+k)}, {vp(RT+8*r+k)}')
        for k in range(0, 8, 2): A(f'v_pk_mul_f32 {vp(a+k)}, {vp(a+k)}, {vp(ACC1+8*p+k)}')
        for k in range(4): A(f'v_cvt_pk_bf16_f32 v{136+k}, v{a+2*k}, v{a+2*k+1}')
        A(f'buffer_store_dwordx4 {vq(136)}, v{VL}, {srd(rWS)}, s{sB1} offen offset:{1024*p} sc1', tag='pst')
    for G in range(NG - 1): zl(G)
    zchk(0, NG - 2)
    g.stamp(14)
    for G in range(24):
        p, q = divmod(G, 8); a = ACC[p & 1]
        def main():
            for kk in range(2):
                ks = 2*q + kk
                for c in range(2):
                    for rt in range(4):
                        d = vq(a + 8*rt + 4*c)
                        A(f'v_mfma_f32_16x16x32_bf16 {d}, {vq(RING + 16*(G % NG) + 8*kk + 4*c)}, {aq(64*rt + 4*ks)}, {"0" if ks == 0 else d}')
        def extra():
            zl(G + NG - 1)
            if p > 0:
                if q == 0: red_w(p - 1)
                if q == 1: red_r(p - 1)
                if q == 2: red_e(p - 1)
                if q == 5: A('s_barrier')
            zchk(G + 1, min(23, G + NG - 1))
        A.weave(A.capture(main), A.capture(extra))
    red_w(2); red_r(2); red_e(2)
    if g.stop <= 3:
        A('s_waitcnt vmcnt(0)'); g.finish_early(); return

    PF, OA, HR = 4, 100, 120
    VP_, VHH, VW0, VO = 130, 131, 132, 134
    BV = 144
    A(f'''v_mov_b32 v{VP_}, v{VL}
    v_lshrrev_b32 v140, 2, v1
    v_mul_u32_u24 v140, 160, v140
    v_and_b32 v141, 3, v1
    v_lshl_add_u32 v{VW0}, v141, 3, v140
    v_add_u32 v{VW0+1}, 61440, v{VW0}
    v_mov_b32 v{VHH}, v{VH}
    s_lshl_b32 s{sT0}, s{sI3}, 2
    s_add_u32 s{sT2}, s{sT0}, s{sW}
    s_mul_i32 s{sB1}, s{sT2}, 24576
    s_add_u32 s{sB1}, s{sB1}, {P}
    s_lshl_b32 s{sB0}, s{sT2}, 7
    s_mul_i32 s{sT0}, s{sJ3}, {20*16384}
    s_add_u32 s{sB0}, s{sB0}, s{sT0}
    s_add_u32 s{sB0}, s{sB0}, {H}''')
    def hres():
        for c in range(5):
            A(f's_add_u32 s{sRL}, s{sB0}, {c*65536}\nbuffer_load_dwordx2 {vp(HR+2*c)}, v{VHH}, {srd(rWS)}, s{sRL} offen sc1')
    hres()
    NV = 28
    def breg(n):
        if n < NV: return 'v', BV + 4*n
        if n < NV + 64: return 'a', 4*(n - NV)
        return 'v', BV + 4*(n - NV - 64)
    def wread(n):
        ks, c = divmod(n, 5); k, r = breg(n)
        off = ks*5120 + c*32; b = VW0
        if ks >= 12: off -= 61440; b += 1
        for hh in range(2): A(f'ds_read_b64_tr_b16 {k}[{r+2*hh}:{r+2*hh+1}], v{b} offset:{off + hh*2560}')
    for n in range(60): wread(n)
    A.waittag('pst')
    def pl(G):
        A(f's_add_u32 s{sRL}, s{sB1}, {G*4096}')
        for k in range(4): A(f'buffer_load_dwordx4 {vq(PF + 16*G + 4*k)}, v{VP_}, {srd(rWS)}, s{sRL} offen offset:{1024*k} sc1')
    A.weave(A.capture(lambda: [wread(n) for n in range(60, NV + 64)]), A.capture(lambda: [pl(G) for G in range(6)]))
    g.check('hr', range(HR, HR + 10), 140, hres, sleep=1)
    for c in range(5):
        for k in range(2):
            A(f'v_lshlrev_b32 v{OA+4*c+2*k}, 16, v{HR+2*c+k}\nv_and_b32 v{OA+4*c+2*k+1}, 0xffff0000, v{HR+2*c+k}')
    A(f'''v_and_b32 v140, 15, v1
    v_mul_u32_u24 v140, 1280, v140
    v_lshrrev_b32 v141, 4, v1
    v_lshl_add_u32 v{VO+1}, v141, 3, v140
    v_bfe_u32 v141, v1, 4, 1
    v_lshl_add_u32 v140, v141, 5, v140
    v_lshrrev_b32 v141, 5, v1
    v_lshl_add_u32 v{VO}, v141, 4, v140
    s_mul_i32 s{sT0}, s{sT2}, {16*1280}
    s_mul_i32 s{sT1}, s{sJ3}, 160
    s_add_u32 s{sB2}, s{sT0}, s{sT1}''')
    def pchk(G):
        if G < 6: g.check(f'p{G}', range(PF + 16*G, PF + 16*G + 16), 140, lambda: [pl(k) for k in range(G, 6)], sleep=1)
    pchk(0)
    A('s_waitcnt lgkmcnt(0)')
    for G in range(6):
        def main():
            for ks in range(4*G, 4*G + 4):
                for c in range(5):
                    n = 5*ks + c; k, r = breg(n)
                    A(f'v_mfma_f32_16x16x32_bf16 {vq(OA+4*c)}, {k}[{r}:{r+3}], {vq(PF+4*ks)}, {vq(OA+4*c)}')
        def extra():
            if G == 1: [wread(n) for n in range(92, 104)]
            if G == 2: [wread(n) for n in range(104, 116)]
            if G == 3: [wread(n) for n in range(116, 120)]
            pchk(G + 1)
        A.weave(A.capture(main), A.capture(extra))
    OO = 120
    for c in range(5):
        for k in range(2): A(f'v_cvt_pk_bf16_f32 v{OO+2*c+k}, v{OA+4*c+2*k}, v{OA+4*c+2*k+1}')
    for pr in range(2):
        o = OO + 4*pr
        A(f'v_permlane16_swap_b32 v{o}, v{o+2}\nv_permlane16_swap_b32 v{o+1}, v{o+3}')
        A(f'buffer_store_dwordx4 {vq(o)}, v{VO}, {srd(rOUT)}, s{sB2} offen offset:{64*pr}')
    A(f'buffer_store_dwordx2 {vp(OO+8)}, v{VO+1}, {srd(rOUT)}, s{sB2} offen offset:128')
    A(f'''s_or_b32 s{sT0}, s2, s{sW}
    s_cmp_lg_u32 s{sT0}, 0
    s_cbranch_scc1 L_end
    v_mov_b32 v140, 0
    s_mov_b64 exec, 1
    buffer_store_dword v2, v140, {srd(rWS)}, 0 offen sc1
    s_mov_b64 exec, -1''')
```

```python
import sys, struct, math
from asmlib import Asm, I

NAME = 'sequential_preLN__ssm_conv_s4__mixer_gmlp__prompt'
def f32(x): return '0x%08x' % struct.unpack('<I', struct.pack('<f', x))[0]

EPOCH = 0
ST1 = 0x1000
FLG = 0x8000
CS = 0xA000
STAMP = 0x20000
CLR = 0x100000
ZST = CLR
H = ZST + 0x20000
Z2N = H + 0x280000
P = Z2N + 0x300000
CLR_END = P + 0x300000
assert CLR_END - CLR == 96 * 23 * 4096
DBG = 0x1000000
WS_BYTES = 0x2000000
TAGC = 0x9E3779B1
SPIN = 1 << 16

AREA = 40960
L_COPY = 0
CSTR = 4160
L_STG = 16640
L_U = 33024
L_TAB = 37632
L_Y = 32768

pX, pAre, pAim, pBre, pBim, pCre, pCim, pLdt, pDsk, pBx, pWin, pWsp, pBsp, pWout, pOut, pDbg, pWs = [4 + 2 * k for k in range(17)]
rX, rWIN, rWSP, rWOUT, rOUT, rWS = 40, 44, 48, 52, 56, 60
sW, sXC, sIDX, sI, sJ, sI3, sJ3, sLB = 64, 65, 66, 67, 68, 69, 70, 71
sT0, sT1, sT2, sT3 = 72, 73, 74, 75
sSPIN = 76
sWSPO = 77
sOFF = 78
sC = 80
sSTAMP = 88
sONES = 90
sRL = 91
sB0, sB1, sB2 = 92, 93, 94
def sp(n): return f's[{n}:{n+1}]'
def srd(n): return f's[{n}:{n+3}]'
def vp(n): return f'v[{n}:{n+1}]'
def vq(n): return f'v[{n}:{n+3}]'
def aq(n): return f'a[{n}:{n+3}]'

class Gen:
    def __init__(self, stop=99, stamps=False, dump=False):
        self.A = Asm(); self.stop = stop; self.stamps = stamps; self.dump = dump
        self.stubs = []; self.nst = 0
    def stamp(self, k):
        if not self.stamps: return
        A = self.A
        A(f's_memrealtime {sp(sSTAMP)}\ns_waitcnt lgkmcnt(0)\nv_writelane_b32 v3, s{sSTAMP}, {k}')
    def stamp_out(self):
        if not self.stamps: return
        A = self.A
        A(f'''s_lshl_b32 s{sT0}, s2, 2
        s_add_u32 s{sT0}, s{sT0}, s{sW}
        s_lshl_b32 s{sT0}, s{sT0}, 6
        s_add_u32 s{sT0}, s{sT0}, {STAMP}
        v_lshlrev_b32 v4, 2, v1
        s_mov_b64 exec, 0xffff
        buffer_store_dword v3, v4, {srd(rWS)}, s{sT0} offen
        s_mov_b64 exec, -1''')
    def finish_early(self):
        self.A('s_branch L_end')

    def _sent(self, regs, tmp):
        A = self.A; regs = list(regs)
        if len(regs) >= 3:
            A(f'v_max3_u32 v{tmp}, v{regs[0]}, v{regs[1]}, v{regs[2]}'); regs = regs[3:]
        else:
            A(f'v_max_u32 v{tmp}, v{regs[0]}, v{regs[1]}'); regs = regs[2:]
        while len(regs) >= 2:
            A(f'v_max3_u32 v{tmp}, v{tmp}, v{regs[0]}, v{regs[1]}'); regs = regs[2:]
        if regs: A(f'v_max_u32 v{tmp}, v{tmp}, v{regs[0]}')
        A(f'v_cmp_eq_u32 vcc, -1, v{tmp}')
    def _tag(self, regs, tmp):
        A = self.A
        A(f'v_xor_b32 v{tmp}, v{regs[0]}, v2')
        for r in regs[1:]:
            A(f'v_bitop3_b32 v{tmp}, v{r}, v2, v{tmp} bitop3:0xbe')
        A(f'v_cmp_ne_u32 vcc, 0, v{tmp}')
    def check(self, name, regs, tmp, reload_fn, sleep=2, kind='sent'):
        A = self.A
        test = self._sent if kind == 'sent' else self._tag
        A.need(*[f'v{r}' for r in regs])
        test(regs, tmp)
        A.branch_label(f's_cbranch_vccnz L_stub_{name}', f'L_ok_{name}')
        self.stubs.append((name, reload_fn, sleep, lambda: test(regs, tmp)))
    def tag_check(self, name, regs, tmp, reload_fn, sleep=4):
        self.check(name, regs, tmp, reload_fn, sleep, 'tag')
    def emit_stubs(self):
        A = self.A
        for name, fn, sleep, test in self.stubs:
            A.reset()
            A.label(f'L_stub_{name}')
            A(f'''s_waitcnt vmcnt(0)
            s_sub_u32 s{sSPIN}, s{sSPIN}, 1
            s_cmp_lt_i32 s{sSPIN}, 0
            s_cbranch_scc1 L_ok_{name}''')
            if sleep: A(f's_sleep {sleep}')
            fn()
            A('s_waitcnt vmcnt(0)')
            test()
            A(f's_cbranch_vccnz L_stub_{name}\ns_branch L_ok_{name}')

    def cmul(self, D, X, Y, T, conj=False):
        A = self.A
        A(f'v_pk_mul_f32 {vp(T)}, {vp(X)}, {vp(Y)} op_sel:[0,0] op_sel_hi:[0,1]')
        A(f'v_pk_fma_f32 {vp(D)}, {vp(X)}, {vp(Y)}, {vp(T)} op_sel:[1,1,0] op_sel_hi:[1,0,1] neg_lo:[1,0,0]' + (' neg_hi:[1,0,1]' if conj else ''))

    def prologue(self):
        A = self.A
        A(f'''s_cmp_ge_u32 s2, 256
        s_cbranch_scc1 L_exit
        s_load_dwordx16 s[4:19], s[0:1], 0
        s_load_dwordx16 s[20:35], s[0:1], 64
        s_load_dwordx2 s[36:37], s[0:1], 128
        v_lshrrev_b32 v2, 6, v0
        v_and_b32 v1, 63, v0
        v_readfirstlane_b32 s{sW}, v2
        v_mov_b32 v3, 0
        s_and_b32 s{sXC}, s2, 7
        s_lshr_b32 s{sIDX}, s2, 3
        s_lshr_b32 s{sT0}, s{sXC}, 1
        s_lshl_b32 s{sT0}, s{sT0}, 3
        s_and_b32 s{sT1}, s{sIDX}, 7
        s_add_u32 s{sI}, s{sT0}, s{sT1}
        s_and_b32 s{sT0}, s{sXC}, 1
        s_lshl_b32 s{sT0}, s{sT0}, 2
        s_lshr_b32 s{sT1}, s{sIDX}, 3
        s_add_u32 s{sJ}, s{sT0}, s{sT1}
        s_lshl_b32 s{sT0}, s{sXC}, 2
        s_and_b32 s{sT1}, s{sIDX}, 3
        s_add_u32 s{sI3}, s{sT0}, s{sT1}
        s_lshr_b32 s{sJ3}, s{sIDX}, 2
        s_mul_i32 s{sLB}, s{sW}, {AREA}
        s_mov_b32 s{sSPIN}, {SPIN}
        s_mov_b32 s{sONES}, 0x3f803f80''')
        for r, n in ((rX, 2048 * 1280), (rWIN, 640 * 3072), (rWSP, 2048 * 4096 + 4096), (rWOUT, 768 * 1280), (rOUT, 2048 * 1280), (rWS, WS_BYTES)):
            A(f's_mov_b32 s{r+2}, {n}\ns_mov_b32 s{r+3}, 0x20000')
        self.stamp(0)
        A('s_waitcnt lgkmcnt(0)')
        for r, p in ((rX, pX), (rWIN, pWin), (rWOUT, pWout), (rOUT, pOut), (rWS, pWs)):
            A(f's_mov_b32 s{r}, s{p}\ns_mov_b32 s{r+1}, s{p+1}')
        A(f's_sub_u32 s{rWSP}, s{pWsp}, 4096\ns_subb_u32 s{rWSP+1}, s{pWsp+1}, 0')
        A(f's_cmp_lt_u32 s{sIDX}, 12\ns_cbranch_scc1 L_helper')

    VSP = 100
    VWI = 106
    def common_consts(self, t):
        A = self.A; VSP, VWI = self.VSP, self.VWI
        A(f'''v_lshrrev_b32 v{t}, 3, v1
        v_and_b32 v{t+1}, 7, v1
        v_lshrrev_b32 v{t+2}, 1, v{t}
        v_xor_b32 v{t+1}, v{t+1}, v{t+2}
        v_lshlrev_b32 v{t+1}, 4, v{t+1}
        v_lshl_add_u32 v{t+2}, v{t}, 12, v{t+1}
        v_xor_b32 v{t+3}, 64, v{t+2}
        v_add_u32 v{VSP}, 4096, v{t+2}
        v_add_u32 v{VSP+1}, {4096 + 32768 - 1024}, v{t+3}
        v_add_u32 v{VSP+2}, {4096 + 128 - 2048}, v{t+2}
        v_add_u32 v{VSP+3}, {4096 + 32768 + 128 - 3072}, v{t+3}''')
        A(f'''v_and_b32 v{t}, 15, v1
        v_lshrrev_b32 v{t+1}, 4, v1
        v_lshrrev_b32 v{t+2}, 1, v{t}
        v_xor_b32 v{t+1}, v{t+1}, v{t+2}
        v_lshlrev_b32 v{t+1}, 4, v{t+1}
        v_lshl_add_u32 v{t+1}, v{t}, 7, v{t+1}
        v_xor_b32 v{t+2}, 64, v{t+1}
        s_add_u32 s{sT0}, s{sLB}, {L_STG}
        v_add_u32 v{VSP+4}, s{sT0}, v{t+1}
        v_add_u32 v{VSP+5}, s{sT0}, v{t+2}''')
        A(f'''s_lshl_b32 s{sWSPO}, s{sI}, 18
        s_lshl_b32 s{sT0}, s{sW}, 10
        s_add_u32 s{sWSPO}, s{sWSPO}, s{sT0}''')
        for r3 in range(3):
            A(f'''v_add_u32 v{t}, {64*r3}, v1
            v_mul_u32_u24 v{t+1}, 5462, v{t}
            v_lshrrev_b32 v{t+1}, 16, v{t+1}
            v_mul_u32_u24 v{t+2}, 12, v{t+1}
            v_sub_u32 v{t}, v{t}, v{t+2}
            v_lshrrev_b32 v{t+2}, 1, v{t+1}
            v_and_b32 v{t+2}, 2, v{t+2}
            v_xor_b32 v{t}, v{t}, v{t+2}
            v_mul_u32_u24 v{t+1}, 3072, v{t+1}
            v_lshl_add_u32 v{t}, v{t}, 4, v{t+1}''')
            if r3: A(f'v_subrev_u32 v{VWI+r3}, {1024*r3}, v{t}')
            else: A(f'v_mov_b32 v{VWI}, v{t}')

    def wsp_dma(self, hb):
        A = self.A; VSP = self.VSP
        rt = hb >> 1
        A(f'''s_add_u32 s{sT0}, s{sW}, {rt}
        s_and_b32 s{sT0}, s{sT0}, 3
        s_lshl_b32 s{sT0}, s{sT0}, 16
        s_add_u32 s{sOFF}, s{sT0}, s{sWSPO}''')
        if hb & 1: A(f's_add_u32 s{sOFF}, s{sOFF}, 512')
        for u in range(2):
            A(f's_add_u32 m0, s{sLB}, {L_STG + (hb & 1) * 8192 + u * 4096}')
            if u: A(f's_add_u32 s{sOFF}, s{sOFF}, 256')
            for n in range(4):
                A(f'buffer_load_dwordx4 v{VSP+n}, {srd(rWSP)}, s{sOFF} offen offset:{1024*n} lds', tag=f'wsp{hb}')
    def wsp_read(self, hb):
        A = self.A; VSP = self.VSP
        rt = hb >> 1
        A.waittag(f'wsp{hb}')
        for kp in range(4):
            for h in range(2):
                ks = (hb & 1) * 8 + kp * 2 + h
                A(f'ds_read_b128 {aq(rt*64 + ks*4)}, v{VSP+4+h} offset:{(hb & 1) * 8192 + kp * 2048}', tag=f'wspr{hb}')

    def win_dma(self, part, ks, slot_off, tag):
        A = self.A; VWI = self.VWI
        for u in range(2):
            A(f's_add_u32 m0, s{sLB}, {slot_off + u * 3072}')
            A(f's_add_u32 s{sOFF}, s{sT3}, {(ks * 32 + u * 16) * 3072 + part * 1536}')
            for r3 in range(3):
                A(f'buffer_load_dwordx4 v{VWI+r3}, {srd(rWIN)}, s{sOFF} offen offset:{1024*r3} lds', tag=tag)
    def win_base(self):
        self.A(f'''s_mul_i32 s{sT3}, s{sW}, {5*32*3072}
        s_mul_i32 s{sT0}, s{sJ}, 192
        s_add_u32 s{sT3}, s{sT3}, s{sT0}''')

    def flag_load(self, va, d):
        self.A(f'''buffer_load_dword v{d}, v{va}, {srd(rWS)}, 0 offen sc1
        buffer_load_dword v{d+1}, v{va+1}, {srd(rWS)}, 0 offen sc1''')
    def flag_addr(self, va):
        self.A(f'''v_lshlrev_b32 v{va}, 6, v1
        v_and_b32 v{va+1}, 31, v1
        v_lshlrev_b32 v{va+1}, 6, v{va+1}
        v_add_u32 v{va}, {FLG}, v{va}
        v_add_u32 v{va+1}, {FLG + 4096}, v{va+1}''')

    def conv_role(self):
        A = self.A
        XR, XF = 4, 20
        PR = 52
        SW, SR, TW, EX, E3, SEL, CW, CA, CB, UW, YW, YR = 66, 74, 78, 81, 83, 92, 94, 95, 96, 97, 98, 99
        FA = 109
        SA = 111
        t = 112
        A(f'''s_mul_i32 s{sT0}, s{sXC}, 20
        s_add_u32 s{sT0}, s{sT0}, s{sIDX}
        s_sub_u32 s{sT2}, s{sT0}, 12
        s_lshl_b32 s{sT0}, s{sT2}, 2
        s_add_u32 s{sT0}, s{sT0}, s{sW}
        s_mul_i32 s{sT1}, s{sT0}, 384
        v_lshl_add_u32 v{t}, v1, 2, s{sT1}
        v_lshl_add_u32 v{t+1}, v1, 1, s{sT1}
        s_lshl_b32 s{sT0}, s{sT0}, 1
        v_mov_b32 v{t+2}, s{sT0}
        global_load_ushort v{PR+12}, v{t+2}, {sp(pLdt)}''')
        ptrs = (pAre, pAim, pBre, pBim, pCre, pCim)
        for k, p in enumerate(ptrs): A(f'global_load_dword v{PR+k}, v{t}, {sp(p)}')
        for k, p in enumerate(ptrs): A(f'global_load_ushort v{PR+6+k}, v{t+1}, {sp(p)} offset:256')
        A(f'global_load_ushort v{PR+13}, v{t+2}, {sp(pDsk)}')
        A(f'v_mov_b32 v{t+3}, 0\nbuffer_load_dword v2, v{t+3}, {srd(rWS)}, 0 offen sc1')
        A(f'''v_mul_u32_u24 v{t+3}, 2560, v0
        s_lshl_b32 s{sOFF}, s{sT2}, 3''')
        for n in range(4):
            for b in range(2):
                A(f'buffer_load_dwordx2 {vp(XR + 4*n + 2*b)}, v{t+3}, {srd(rX)}, s{sOFF} offen offset:{1280*b}')
            if n < 3: A(f's_add_u32 s{sOFF}, s{sOFF}, {512*1280}')
        A(f's_lshl_b32 s79, s{sT2}, 14\ns_add_u32 s79, s79, {H}')
        self.common_consts(t)
        self.wsp_dma(0); self.wsp_dma(1)
        A(f'v_lshlrev_b32 v{t}, 2, v1')
        for r in range(8):
            A(f'v_xor_b32 v{SW+r}, {32*r}, v{t}\nv_add_u32 v{SW+r}, s{sLB}, v{SW+r}')
        A(f'''v_and_b32 v{t}, 15, v1
        v_lshrrev_b32 v{t+1}, 4, v1
        v_and_b32 v{t+2}, 7, v1
        v_lshlrev_b32 v{t+2}, 1, v{t+2}
        v_xor_b32 v{t+2}, v{t+2}, v{t+1}
        v_lshlrev_b32 v{t+2}, 4, v{t+2}
        v_lshl_add_u32 v{t+3}, v{t}, 8, s{sLB}''')
        for ks in range(4):
            A(f'v_xor_b32 v{SR+ks}, {64*ks}, v{t+2}\nv_add_u32 v{SR+ks}, v{SR+ks}, v{t+3}')
        A(f'''s_add_u32 s{sT0}, s{sLB}, {L_TAB}
        v_lshlrev_b32 v{t+2}, 3, v{t+1}
        v_lshl_add_u32 v{TW}, v{t}, 5, v{t+2}
        v_add_u32 v{TW}, s{sT0}, v{TW}
        v_lshl_add_u32 v{t+2}, v{t}, 4, v{t+2}
        v_lshlrev_b32 v{t+3}, 7, v{t+1}
        v_lshl_add_u32 v{t+3}, v{t}, 3, v{t+3}
        v_cmp_gt_u32 vcc, 32, v1
        v_cndmask_b32 v{t+2}, v{t+3}, v{t+2}, vcc
        v_add_u32 v{TW+1}, s{sT0}, v{t+2}
        v_lshrrev_b32 v{t+2}, 1, v{t+1}
        v_lshlrev_b32 v{t+2}, 7, v{t+2}
        v_and_b32 v{t+3}, 1, v{t+1}
        v_lshl_add_u32 v{t+2}, v{t+3}, 8, v{t+2}
        v_lshl_add_u32 v{t+2}, v{t}, 2, v{t+2}
        s_add_u32 s{sT1}, s{sT0}, 1024
        v_add_u32 v{TW+2}, s{sT1}, v{t+2}''')
        A(f'''v_and_b32 v{t+2}, 3, v1
        v_mul_u32_u24 v{t+2}, {CSTR}, v{t+2}
        v_lshrrev_b32 v{t+3}, 2, v{t}
        v_lshlrev_b32 v{t+3}, 3, v{t+3}
        v_sub_u32 v{t+2}, v{t+2}, v{t+3}
        v_lshl_add_u32 v{t+2}, v{t+1}, 4, v{t+2}
        s_add_u32 s{sT1}, s{sLB}, {L_COPY + 24 + 16}
        v_add_u32 v{CA}, s{sT1}, v{t+2}
        v_lshlrev_b32 v{t+2}, 4, v{t+1}
        v_lshl_add_u32 v{t+2}, v{t}, 5, v{t+2}
        s_add_u32 s{sT1}, s{sLB}, {L_U}
        v_add_u32 v{CB}, s{sT1}, v{t+2}''')
        A(f'''v_lshl_add_u32 v{t+2}, v{t}, 2, v{t+1}
        v_bfe_u32 v{t+3}, v{t}, 1, 2
        v_xor_b32 v{t+2}, v{t+2}, v{t+3}
        s_add_u32 s{sT1}, s{sLB}, {L_Y}
        v_lshl_add_u32 v{YW}, v{t+2}, 4, s{sT1}
        v_lshrrev_b32 v{t+2}, 1, v0
        v_bfe_u32 v{t+3}, v0, 4, 2
        v_xor_b32 v{t+2}, v{t+2}, v{t+3}
        v_and_b32 v{t+3}, 1, v0
        v_lshlrev_b32 v{t+3}, 3, v{t+3}
        v_lshl_add_u32 v{t+2}, v{t+2}, 4, v{t+3}
        v_add_u32 v{YR}, {L_Y}, v{t+2}
        v_lshlrev_b32 v{UW}, 2, v0
        v_add_u32 v{UW}, {L_U + 480}, v{UW}
        v_lshlrev_b32 v{SA}, 4, v0
        s_add_u32 s{sT1}, s{sLB}, {L_COPY + 16}
        v_lshl_add_u32 v{CW}, v1, 4, s{sT1}''')
        self.flag_addr(FA)
        A(f'''v_lshlrev_b32 v{t+2}, 1, v1
        s_add_u32 s{sT1}, s{sT0}, {2*575}
        v_sub_u32 v{EX}, s{sT1}, v{t+2}
        v_lshlrev_b32 v{t+2}, 2, v1
        s_add_u32 s{sT1}, s{sT0}, {2*510}
        v_sub_u32 v{EX+1}, s{sT1}, v{t+2}
        v_and_b32 v{t+2}, 1, v1
        v_cmp_eq_u32 vcc, 0, v{t+2}
        v_mov_b32 v{t+2}, 0x05040504
        v_mov_b32 v{t+3}, 0x01000504
        v_mov_b32 v{t+4}, 0x01000100
        v_cndmask_b32 v{SEL}, v{t+3}, v{t+2}, vcc
        v_cndmask_b32 v{SEL+1}, v{t+4}, v{t+3}, vcc
        v_lshlrev_b32 v{t+2}, 3, v1
        s_sub_u32 s{sT1}, s{sT0}, 0x8500''')
        for j in range(9):
            A(f'''v_sub_u32 v{t+3}, {511-j}, v{t+2}
            v_cvt_f32_i32 v{t+4}, v{t+3}
            v_cvt_pk_bf16_f32 v{t+4}, v{t+4}, 0
            v_lshl_add_u32 v{t+4}, v{t+4}, 1, s{sT1}
            v_cmp_gt_i32 vcc, 256, v{t+3}''')
            if j == 8: A(f'v_min_u32 v{t+3}, 768, v{t+3}')
            A(f'''v_lshl_add_u32 v{t+3}, v{t+3}, 1, s{sT0}
            v_cndmask_b32 v{E3+j}, v{t+4}, v{t+3}, vcc''')
        A(f'''v_mov_b32 v{t+4}, 0
        v_mov_b32 v{t+5}, 0
        v_min_u32 v{t+2}, 59, v1
        v_lshl_add_u32 v{t+2}, v{t+2}, 3, s{sLB}
        ds_write_b64 v{t+2}, {vp(t+4)} offset:{L_U}
        v_mov_b32 v{t+2}, s{sT0}
        ds_write_b32 v{t+2}, v{t+4} offset:1536''')
        l2e = math.log2(math.e); i2p = 1 / (2 * math.pi)
        for k, mlt in enumerate((1, 16, 256)):
            A(f's_mov_b32 s{sC+2*k}, {f32(l2e*mlt)}\ns_mov_b32 s{sC+2*k+1}, {f32(i2p*mlt)}')
        self.stamp(1)
        DT = 124
        A(f'''v_lshlrev_b32 v{DT}, 16, v{PR+12}
        v_mul_f32 v{DT}, {f32(l2e)}, v{DT}
        v_exp_f32 v{DT}, v{DT}
        v_cvt_pk_bf16_f32 v{DT}, v{DT}, 0
        v_lshlrev_b32 v{DT}, 16, v{DT}
        v_mov_b32 v{DT+1}, 0x3f80''')
        ONE = DT + 1
        KACC = 112; FR = 192
        PA, PB, PC, T, E1, E16, COL, EO = 126, 128, 130, 132, 134, 136, 138, 140
        EE = 142
        M = 156
        R0, R1, K0, K1, G = 172, 174, 176, 177, 178
        def Ereg(k): return EE + (k - 2) if k % 2 == 0 else (E1 if k == 1 else EO)
        def group(gm):
            for k, dst in enumerate((PA, PA + 1, PB, PB + 1, PC, PC + 1)):
                if gm == 0: A(f'v_lshlrev_b32 v{dst}, 16, v{PR+k}')
                elif gm == 1: A(f'v_and_b32 v{dst}, 0xffff0000, v{PR+k}')
                else: A(f'v_lshlrev_b32 v{dst}, 16, v{PR+6+k}')
            A(f'v_pk_mul_f32 {vp(PA)}, {vp(PA)}, {vp(DT)} op_sel_hi:[1,0]')
            A(f'v_pk_mul_f32 {vp(PB)}, {vp(PB)}, {vp(DT)} op_sel_hi:[1,0]')
            for k in range(3): A(f'v_pk_mul_f32 {vp(G+2*k)}, {vp(PA)}, {sp(sC+2*k)}')
            self.cmul(COL, PC, PB, T, conj=True)
            dsts = (E1, E16, M)
            for k in range(3): A(f'v_fract_f32 v{G+2*k+1}, v{G+2*k+1}')
            for k in range(3):
                A(f'v_exp_f32 v{G+2*k}, v{G+2*k}\nv_cos_f32 v{dsts[k]}, v{G+2*k+1}\nv_sin_f32 v{dsts[k]+1}, v{G+2*k+1}')
            A(f'v_cvt_pk_bf16_f32 v{K0}, v{COL}, v{COL+1}')
            for k in range(3):
                A(f'v_pk_mul_f32 {vp(dsts[k])}, {vp(dsts[k])}, {vp(G+2*k)} op_sel_hi:[1,0]' + (' neg_hi:[1,0]' if k == 1 else ''))
            A(f'ds_write2st64_b32 v{SW}, v{K0}, v{ONE} offset0:0 offset1:16')
            for k in range(1, 16):
                self.cmul(COL, COL, E16, T)
                if k > 1: self.cmul(Ereg(k), Ereg(k - 1), E1, R0)
                A(f'v_cvt_pk_bf16_f32 v{K0}, v{COL}, v{COL+1}\nv_cvt_pk_bf16_f32 v{K1}, v{Ereg(k)}, v{Ereg(k)+1}')
                A(f'ds_write2st64_b32 v{SW + (k & 7)}, v{K0}, v{K1} offset0:{k} offset1:{16+k}')
            Mr = lambda k: M + 2 * (k - 1)
            self.cmul(Mr(2), Mr(1), Mr(1), T); self.cmul(Mr(3), Mr(2), Mr(1), T); self.cmul(Mr(4), Mr(2), Mr(2), T)
            self.cmul(Mr(5), Mr(4), Mr(1), T); self.cmul(Mr(6), Mr(4), Mr(2), T); self.cmul(Mr(7), Mr(4), Mr(3), T); self.cmul(Mr(8), Mr(4), Mr(4), T)
            for j in range(8):
                a = Mr(1)
                if j: self.cmul(R0, Mr(1), Ereg(2 * j), T); a = R0
                b = Mr(2 + (j >> 2))
                if j & 3: self.cmul(R1, b, Ereg(4 * (j & 3)), T); b = R1
                A(f'v_cvt_pk_bf16_f32 v{K0}, v{a}, v{a+1}\nv_cvt_pk_bf16_f32 v{K1}, v{b}, v{b+1}')
                A(f'ds_write2st64_b32 v{SW+j}, v{K0}, v{K1} offset0:{32+j} offset1:{40+j}')
            for j in range(4):
                a, b = Mr(4 + (j >> 1)), Mr(6 + (j >> 1))
                if j & 1:
                    self.cmul(R0, a, Ereg(8), T); self.cmul(R1, b, Ereg(8), T); a, b = R0, R1
                A(f'v_cvt_pk_bf16_f32 v{K0}, v{a}, v{a+1}\nv_cvt_pk_bf16_f32 v{K1}, v{b}, v{b+1}')
                A(f'ds_write2st64_b32 v{SW+j}, v{K0}, v{K1} offset0:{48+j} offset1:{56+j}')
            A(f'v_cvt_pk_bf16_f32 v{K0}, v{Mr(8)}, v{Mr(8)+1}\nds_write_b32 v{SW+4}, v{K0} offset:{52*256}')
        def greads():
            for ks in range(4):
                for tl in range(4): A(f'ds_read_b128 {vq(FR + 16*ks + 4*tl)}, v{SR+ks} offset:{4096*tl}')
        def gmfma(gm):
            for ks in range(4):
                for tl in range(3):
                    c = '0' if gm == 0 and ks == 0 else vq(KACC + 4*tl)
                    A(f'v_mfma_f32_16x16x32_bf16 {vq(KACC+4*tl)}, {vq(FR+16*ks+4+4*tl)}, {vq(FR+16*ks)}, {c}')
        def xunpack():
            for n in range(4):
                for b in range(2):
                    for c in range(4):
                        src = XR + 4*n + 2*b + (c >> 1); dst = XF + 8*c + 2*n + b
                        A(f'v_lshlrev_b32 v{dst}, 16, v{src}' if c % 2 == 0 else f'v_and_b32 v{dst}, 0xffff0000, v{src}')
        def stat_loads():
            for n in range(4):
                A(f's_mov_b32 s{sRL}, {ST1 + 4096*n}\nbuffer_load_dwordx4 {vq(XR+4*n)}, v{SA}, {srd(rWS)}, s{sRL} offen sc1')
        group(0); greads()
        for gm in (1, 2):
            g = A.capture(lambda: group(gm)); m = A.capture(lambda: gmfma(gm - 1))
            A.weave(g, m, start=24, end=72)
            greads()
        A(f'v_add_u32 v2, {TAGC}, v2')
        xunpack()
        stat_loads()
        gmfma(2)
        self.stamp(2)
        A(f'''v_lshlrev_b32 v{PR+13}, 16, v{PR+13}
        s_mov_b64 exec, 1
        v_add_f32 v{KACC}, v{KACC}, v{PR+13}
        s_mov_b64 exec, -1''')
        for tl in range(3):
            A(f'v_cvt_pk_bf16_f32 v{126+2*tl}, v{KACC+4*tl}, v{KACC+4*tl+1}\nv_cvt_pk_bf16_f32 v{127+2*tl}, v{KACC+4*tl+2}, v{KACC+4*tl+3}')
        A(f'''ds_write_b64 v{TW}, {vp(126)}
        ds_write_b64 v{TW+1}, {vp(128)} offset:512
        ds_write2_b32 v{TW+2}, v130, v131 offset0:0 offset1:16''')
        V = 132; EV = 160
        A(f'''ds_read_u16 v{V}, v{EX} offset:130
        ds_read_u16 v{V+1}, v{EX} offset:128
        ds_read_u16 v{V+2}, v{EX} offset:2
        ds_read_u16 v{V+3}, v{EX}
        ds_read_u16 v{V+4}, v{EX+1} offset:4
        ds_read_b32 v{V+5}, v{EX+1}''')
        for j in range(9): A(f'ds_read_u16 v{V+6+j}, v{E3+j}')
        A(f'''s_mov_b32 s{sC}, 0x05040504
        s_mov_b32 s{sC+1}, 0x01000100
        s_mov_b32 s{sC+2}, 0x03020302
        s_mov_b32 s{sC+3}, 0x01000302
        s_mov_b32 s{sC+4}, 0x03020504
        v_mov_b32 v{V+16}, 0
        v_mov_b32 v{V+17}, 0
        v_add_u32 v{V+18}, {CSTR - 4}, v{CW}
        v_subrev_u32 v{V+19}, 4, v{CW}''')
        def put(k, e):
            A(f'ds_write_b128 v{CW}, {vq(e)} offset:{3*CSTR + 1024*k}')
            A(f'ds_write_b128 v{CW}, {vq(e+4)} offset:{2*CSTR + 1024*k}')
            if k: A(f'v_add_u32 v{V+18}, 1024, v{V+18}\nv_add_u32 v{V+19}, 1024, v{V+19}')
            A(f'ds_write2_b32 v{V+18}, v{e}, v{e+1} offset0:0 offset1:1\nds_write2_b32 v{V+18}, v{e+2}, v{e+3} offset0:2 offset1:3')
            A(f'ds_write2_b32 v{V+19}, v{e+4}, v{e+5} offset0:0 offset1:1\nds_write2_b32 v{V+19}, v{e+6}, v{e+7} offset0:2 offset1:3')
        for k in range(2):
            a, b, e = V + 2*k, V + 2*k + 1, EV + 8*k
            sels = [f's{sC}', f'v{SEL}', f's{sC+1}', f's{sC+1}', f's{sC}', f'v{SEL+1}', f's{sC+1}', f's{sC+1}']
            for n in range(8): A(f'v_perm_b32 v{e+n}, v{a}, v{b}, {sels[n]}')
            put(k, e)
        a, b, e = V + 4, V + 5, EV + 16
        sels = [sC, sC+2, sC+3, sC+1, sC+4, sC+2, sC+1, sC+1]
        for n in range(8): A(f'v_perm_b32 v{e+n}, v{a}, v{b}, s{sels[n]}')
        put(2, e)
        e = EV + 24
        for n in range(4):
            A(f'v_lshl_or_b32 v{e+n}, v{V+6+2*n+1}, 16, v{V+6+2*n}\nv_lshl_or_b32 v{e+4+n}, v{V+6+2*n+2}, 16, v{V+6+2*n+1}')
        put(3, e)
        A(f'''v_bfe_u32 v{V}, v1, 3, 2
        v_mul_u32_u24 v{V+1}, {CSTR}, v{V}
        v_lshrrev_b32 v{V}, 1, v{V}
        v_and_b32 v{V+2}, 7, v1
        v_add_u32 v{V}, v{V}, v{V+2}
        v_lshl_add_u32 v{V}, v{V}, 2, v{V+1}
        v_add_u32 v{V}, s{sLB}, v{V}
        ds_write_b32 v{V}, v{V+16} offset:{L_COPY + 16 + 4092}''')
        self.stamp(3)
        self.tag_check('st1', [XR + 4*n + 2*b + 1 for n in range(4) for b in range(2)], V, stat_loads)
        self.stamp(4)
        RS, NM = 132, 140
        for n in range(4):
            for b in range(2):
                A(f'v_and_b32 v{RS+2*n+b}, 0xffff0000, v{XR+4*n+2*b}\nv_lshlrev_b32 v{NM+2*n+b}, 16, v{XR+4*n+2*b}')
        for k in range(8): A(f'v_rcp_f32 v{RS+k}, v{RS+k}')
        for n in range(4): A(f'v_pk_mul_f32 {vp(NM+2*n)}, {vp(NM+2*n)}, {vp(RS+2*n)} neg_lo:[1,0] neg_hi:[1,0]')
        U = 148
        A(f'v_add_u32 v{V+40}, {2*AREA}, v{UW}')
        for c in range(4):
            for n in range(4): A(f'v_pk_fma_f32 {vp(U+2*n)}, {vp(XF+8*c+2*n)}, {vp(RS+2*n)}, {vp(NM+2*n)}')
            for n in range(4): A(f'v_cvt_pk_bf16_f32 v{U+8+n}, v{U+2*n}, v{U+2*n+1}')
            ad = UW if c < 2 else V + 40; o = (c & 1) * (AREA // 256)
            A(f'ds_write2st64_b32 v{ad}, v{U+8}, v{U+9} offset0:{o} offset1:{o+4}\nds_write2st64_b32 v{ad}, v{U+10}, v{U+11} offset0:{o+8} offset1:{o+12}')
        ACC = 52; F0 = 128
        def fa(s, q): return F0 + 64*s + 4*q
        def fb(s, gmm): return F0 + 64*s + 32 + 4*gmm
        def areads(rho):
            s = rho & 1
            for q in range(8):
                off = 64 * (63 - (8*q + rho))
                A(f'ds_read_b64 {vp(fa(s,q))}, v{CA} offset:{off}\nds_read_b64 {vp(fa(s,q)+2)}, v{CA} offset:{off+8}')
        def breads(rho):
            s = rho & 1
            for gmm in range(8): A(f'ds_read_b128 {vq(fb(s,gmm))}, v{CB} offset:{448 - 64*rho + 512*gmm}')
        def abreads(rho):
            s = rho & 1
            for q in range(8):
                off = 64 * (63 - (8*q + rho))
                A(f'ds_read_b128 {vq(fb(s,q))}, v{CB} offset:{448 - 64*rho + 512*q}')
                A(f'ds_read_b64 {vp(fa(s,q))}, v{CA} offset:{off}\nds_read_b64 {vp(fa(s,q)+2)}, v{CA} offset:{off+8}')
        def mf(rho):
            s = rho & 1; seen = set()
            for mx in range(8):
                prs = [(mx, k) for k in range(mx + 1)] + [(k, mx) for k in range(mx)]
                first = True
                for q, gmm in prs:
                    be = q + gmm
                    if be > 7: continue
                    if first: A.need(vq(fa(s, mx)), vq(fb(s, mx))); first = False
                    c = '0' if rho == 0 and be not in seen else vq(ACC + 4*be)
                    seen.add(be)
                    A(f'v_mfma_f32_16x16x32_bf16 {vq(ACC+4*be)}, {vq(fa(s,q))}, {vq(fb(s,gmm))}, {c}')
        A('s_waitcnt lgkmcnt(0)\ns_barrier')
        abreads(0)
        self.stamp(5)
        for rho in range(8):
            def fill():
                if rho + 1 < 8: abreads(rho + 1)
                if rho >= 1 and rho + 1 < 8:
                    A.waittag(f'wspr{rho-1}')
                    self.wsp_dma(rho + 1)
                if rho == 6: self.flag_load(FA, XR)
                self.wsp_read(rho)
            m = A.capture(lambda: mf(rho)); f = A.capture(fill)
            A.weave(m, f, start=1)
        self.stamp(6)
        for be in range(8): A(f'ds_write_b128 v{YW}, {vq(ACC+4*be)} offset:{1024*be}')
        self.win_base()
        A('s_waitcnt lgkmcnt(0)')
        self.win_dma(1, 0, 0, 'wz2')
        A('s_barrier')
        Y = 128
        A(f'v_add_u32 v{YW}, {2*AREA}, v{YR}')
        for c in range(4):
            for n in range(4):
                A(f'ds_read_b64 {vp(Y+8*c+2*n)}, v{YR if c < 2 else YW} offset:{(c & 1)*AREA + 2048*n}')
        self.tag_check('flgc', [XR, XR + 1], 126, lambda: self.flag_load(FA, XR))
        O = 160
        for n in range(4):
            for c in range(4): A(f'v_pk_add_f32 {vp(Y+8*c+2*n)}, {vp(Y+8*c+2*n)}, {vp(XF+8*c+2*n)}')
            for b in range(2):
                for cp in range(2): A(f'v_cvt_pk_bf16_f32 v{O+4*n+2*b+cp}, v{Y+16*cp+2*n+b}, v{Y+16*cp+8+2*n+b}')
            A(f'buffer_store_dwordx4 {vq(O+4*n)}, v{SA}, {srd(rWS)}, s79 offen sc1')
            if n < 3: A(f's_add_u32 s79, s79, 4096')
        for ks in range(1, 5): self.win_dma(1, ks, ks * 6144, 'wz2')
        self.stamp(7)
        A('s_branch L_join')

    def helper_role(self):
        A = self.A
        A.reset(); A.label('L_helper')
        t = 112; D = 128; FA = 109
        A(f'v_mov_b32 v{t}, 0\nbuffer_load_dword v2, v{t}, {srd(rWS)}, 0 offen sc1')
        A(f's_cmp_ge_u32 s{sIDX}, 8\ns_cbranch_scc1 L_nostat')
        A(f'''s_lshl_b32 s{sT0}, s{sXC}, 3
        s_add_u32 s{sT0}, s{sT0}, s{sIDX}
        s_lshl_b32 s{sT0}, s{sT0}, 2
        s_add_u32 s{sT0}, s{sT0}, s{sW}
        s_mul_i32 s{sOFF}, s{sT0}, {8*1280}
        v_lshrrev_b32 v{t}, 3, v1
        v_mul_u32_u24 v{t+1}, 1280, v{t}
        v_and_b32 v{t+2}, 7, v1
        v_lshl_add_u32 v{t+1}, v{t+2}, 4, v{t+1}''')
        for n in range(10): A(f'buffer_load_dwordx4 {vq(D+4*n)}, v{t+1}, {srd(rX)}, s{sOFF} offen offset:{128*n}')
        A(f'''s_lshl_b32 s{sT0}, s{sT0}, 6
        s_add_u32 s{sT0}, s{sT0}, {ST1}
        v_lshlrev_b32 v{t}, 3, v{t}
        v_mov_b32 v{t+4}, 0
        v_mov_b32 v{t+5}, 0
        v_mov_b32 v{t+6}, 0
        v_mov_b32 v{t+7}, 0''')
        for k in range(40):
            A(f'v_dot2_f32_bf16 v{t+4+(k&1)}, v{D+k}, s{sONES}, v{t+4+(k&1)}\nv_dot2_f32_bf16 v{t+6+(k&1)}, v{D+k}, v{D+k}, v{t+6+(k&1)}')
        A(f'v_add_f32 v{t+4}, v{t+4}, v{t+5}\nv_add_f32 v{t+5}, v{t+6}, v{t+7}')
        for m in ('quad_perm:[1,0,3,2]', 'quad_perm:[2,3,0,1]', 'row_half_mirror'):
            A(f'v_add_f32_dpp v{t+4}, v{t+4}, v{t+4} {m} row_mask:0xf bank_mask:0xf\nv_add_f32_dpp v{t+5}, v{t+5}, v{t+5} {m} row_mask:0xf bank_mask:0xf')
        A(f'''v_mul_f32 v{t+4}, {f32(1/640)}, v{t+4}
        v_mul_f32 v{t+5}, {f32(1/640)}, v{t+5}
        v_fma_f32 v{t+5}, -v{t+4}, v{t+4}, v{t+5}
        v_max_f32 v{t+5}, 0, v{t+5}
        v_cvt_pk_bf16_f32 v{t+5}, 0, v{t+5}
        v_add_f32 v{t+5}, {f32(1e-5)}, v{t+5}
        v_cvt_pk_bf16_f32 v{t+5}, 0, v{t+5}
        v_sqrt_f32 v{t+5}, v{t+5}
        v_add_u32 v{t+7}, {TAGC}, v2
        v_cvt_pk_bf16_f32 v{t+6}, v{t+4}, v{t+5}
        s_mov_b32 exec_lo, 0x01010101
        s_mov_b32 exec_hi, 0x01010101
        buffer_store_dwordx2 {vp(t+6)}, v{t}, {srd(rWS)}, s{sT0} offen sc1
        s_mov_b64 exec, -1''')
        A.label('L_nostat')
        self.stamp(1)
        A(f'''s_and_b32 s{sT0}, s{sXC}, 1
        s_mul_i32 s{sT0}, s{sT0}, 768
        s_lshl_b32 s{sT1}, s{sIDX}, 7
        s_add_u32 s{sT0}, s{sT0}, s{sT1}
        s_cmp_ge_u32 s{sIDX}, 6
        s_cselect_b32 s{sT1}, 768, 0
        s_add_u32 s{sT0}, s{sT0}, s{sT1}
        s_mul_i32 s{sT1}, s{sW}, {160*3072}
        s_add_u32 s{sOFF}, s{sT0}, s{sT1}
        v_lshrrev_b32 v{t}, 3, v1
        v_mul_u32_u24 v{t+1}, 3072, v{t}
        v_and_b32 v{t+2}, 7, v1
        v_lshl_add_u32 v{t+1}, v{t+2}, 4, v{t+1}''')
        for n in range(20):
            A(f'buffer_load_dwordx4 {vq(D+4*n)}, v{t+1}, {srd(rWIN)}, s{sOFF} offen')
            if n < 19: A(f's_add_u32 s{sOFF}, s{sOFF}, {8*3072}')
        A(f'''s_mul_i32 s{sT0}, s{sXC}, 12
        s_add_u32 s{sT2}, s{sT0}, s{sIDX}
        s_mul_i32 s{sOFF}, s{sT2}, {23*4096}
        s_add_u32 s{sOFF}, s{sOFF}, {CLR}
        v_lshlrev_b32 v{t+3}, 4, v0
        v_mov_b32 v4, -1
        v_mov_b32 v5, -1
        v_mov_b32 v6, -1
        v_mov_b32 v7, -1''')
        for n in range(23):
            A(f'buffer_store_dwordx4 v[4:7], v{t+3}, {srd(rWS)}, s{sOFF} offen sc1')
            if n < 22: A(f's_add_u32 s{sOFF}, s{sOFF}, 4096')
        self.common_consts(t + 4)
        self.flag_addr(FA)
        S = 8
        A(f's_mov_b32 s{sC}, 0x00003f80\ns_mov_b32 s{sC+1}, 0x3f800000')
        for k in range(8): A(f'v_mov_b32 v{S+k}, 0')
        for n in range(20):
            for k in range(8): A(f'v_dot2_f32_bf16 v{S+k}, v{D+4*n+(k>>1)}, s{sC+(k&1)}, v{S+k}')
        A(f'''v_lshlrev_b32 v{t}, 5, v0
        ds_write_b128 v{t}, {vq(S)}
        ds_write_b128 v{t}, {vq(S+4)} offset:16
        v_add_u32 v2, {TAGC}, v2
        s_waitcnt vmcnt(0) lgkmcnt(0)
        s_barrier
        s_cmp_lg_u32 s{sW}, 0
        s_cbranch_scc1 L_nocs
        v_lshlrev_b32 v{t}, 2, v1''')
        for k in range(16): A(f'ds_read2st64_b32 {vp(D+2*k)}, v{t} offset0:{2*k} offset1:{2*k+1}')
        for k in range(1, 16): A(f'v_pk_add_f32 {vp(D)}, {vp(D)}, {vp(D+2*k)}')
        A(f'''v_add_f32 v{D}, v{D}, v{D+1}
        s_mul_i32 s{sT0}, s{sXC}, 3072
        s_lshl_b32 s{sT1}, s{sIDX}, 8
        s_add_u32 s{sT0}, s{sT0}, s{sT1}
        s_add_u32 s{sT0}, s{sT0}, {CS}
        buffer_store_dword v{D}, v{t}, {srd(rWS)}, s{sT0} offen sc1
        s_lshl_b32 s{sT0}, s{sT2}, 6
        s_add_u32 s{sT0}, s{sT0}, {FLG}
        v_mov_b32 v{t}, 0
        s_waitcnt vmcnt(0)
        s_mov_b64 exec, 1
        buffer_store_dword v2, v{t}, {srd(rWS)}, s{sT0} offen sc1
        s_mov_b64 exec, -1''')
        A('s_waitcnt vmcnt(0) lgkmcnt(0)')
        A.label('L_nocs')
        self.stamp(2)
        self.wsp_dma(0); self.wsp_dma(1)
        for hb in range(8):
            self.wsp_read(hb)
            if hb + 2 < 8:
                A.waittag(f'wspr{hb}')
                self.wsp_dma(hb + 2)
        A('s_waitcnt lgkmcnt(0)')
        self.stamp(3)
        self.win_base()
        for ks in range(5): self.win_dma(1, ks, ks * 6144, 'wz2')
        self.flag_load(FA, 4)
        self.tag_check('flgh', [4, 5], 126, lambda: self.flag_load(FA, 4), sleep=8)
        self.stamp(7)

    def build(self):
        A = self.A
        self.prologue()
        self.conv_role()
        self.helper_role()
        A.label('L_join')
        A('s_waitcnt vmcnt(0) lgkmcnt(0)')
        from gen2 import rest
        rest(self)
        A.label('L_end')
        self.stamp(15)
        self.stamp_out()
        A.label('L_exit')
        A('s_endpgm')
        self.emit_stubs()
        body = A.finish()
        hdr = open(f'cdna_kernels/{NAME}.s.ref').read().split('; Override launch')[0]
        txt = hdr + f'''; @launch grid=(256,1,1) block=(256,1,1) lds=163840
.amdgcn_target "amdgcn-amd-amdhsa--gfx950"
.text
.globl {NAME}_kernel
.p2align 8
.type {NAME}_kernel,@function
{NAME}_kernel:
{body}.section .rodata,"a"
.p2align 6
.amdhsa_kernel {NAME}_kernel
  .amdhsa_next_free_vgpr 512
  .amdhsa_next_free_sgpr 96
  .amdhsa_accum_offset 256
  .amdhsa_group_segment_fixed_size 0
  .amdhsa_kernarg_size 136
  .amdhsa_user_sgpr_count 2
  .amdhsa_user_sgpr_kernarg_segment_ptr 1
  .amdhsa_system_sgpr_workgroup_id_x 1
.end_amdhsa_kernel
'''
        return txt

if __name__ == '__main__':
    import argparse
    ap = argparse.ArgumentParser()
    ap.add_argument('-o', default=f'cdna_kernels/{NAME}.s')
    ap.add_argument('--stop', type=int, default=99)
    ap.add_argument('--stamps', action='store_true')
    ap.add_argument('--dump', action='store_true')
    a = ap.parse_args()
    g = Gen(a.stop, a.stamps, a.dump)
    open(a.o, 'w').write(g.build())
    print(g.A.stats)
```

```python
from gen import *

def rest(g):
    A = g.A
    if g.stop <= 1:
        g.finish_early(); return
    HA = 4
    CS2 = 84
    VH, VZ, VBS = 90, 91, 92
    VB = 94
    T0 = 102
    ACC2, SUM, SQ, ON, ACC1, CS1 = 112, 136, 140, 144, 148, 172
    TT = 196
    BR = 208; NBR = 12
    VL16 = g.VL16
    BSTEP = 57344
    def lds(absoff): return f'v{VB + absoff // BSTEP} offset:{absoff % BSTEP}'
    A(f'''v_and_b32 v{T0}, 15, v1
    v_lshrrev_b32 v{T0+1}, 4, v1
    v_lshlrev_b32 v{VH}, 3, v{T0}
    v_lshl_add_u32 v{VH}, v{T0+1}, 14, v{VH}
    s_lshl_b32 s{sT0}, s{sI}, 2
    s_add_u32 s{sT2}, s{sT0}, s{sW}
    s_lshl_b32 s{sB0}, s{sT2}, 7
    s_add_u32 s{sB0}, s{sB0}, {H}
    s_lshl_b32 s{sT0}, s{sT2}, 5
    v_lshl_add_u32 v{T0+3}, v{T0}, 1, s{sT0}
    global_load_ushort v{VBS}, v{T0+3}, {sp(pBsp)}
    v_mov_b32 v{VB}, v{VL16}
    v_add_u32 v{VB+1}, {BSTEP}, v{VL16}
    v_add_u32 v{VB+2}, {2*BSTEP}, v{VL16}
    s_add_u32 s{sT0}, s{sL2}, {L_CS}
    v_lshl_add_u32 v{T0+2}, v{T0}, 2, s{sT0}
    v_lshl_add_u32 v{T0+3}, v{T0+1}, 4, s{sT0}
    s_mul_i32 s{sT3}, s{sJ}, 122880
    s_mul_i32 s{sT0}, s{sW}, 6144
    s_add_u32 s{sT3}, s{sT3}, s{sT0}
    s_add_u32 s{sT3}, s{sT3}, {WIT}''')
    for k in range(4): A(f'v_mov_b32 v{ON+k}, s{sONES}')
    def hloads(grp):
        for ks in range(4 * grp, 4 * grp + 4):
            for hh in range(2):
                A(f's_add_u32 s{sRL}, s{sB0}, {(8*ks + 4*hh) * 16384}')
                A(f'buffer_load_dwordx2 {vp(HA + 4*ks + 2*hh)}, v{VH}, {srd(rWS)}, s{sRL} offen sc1')
    A(f's_cmp_ge_u32 s{sIDX}, 12\ns_cbranch_scc1 L_ok_pre')
    def pre(): A(f'buffer_load_dwordx2 {vp(HA)}, v{VH}, {srd(rWS)}, s{sB0} offen sc1')
    pre()
    g.check('pre', [HA, HA + 1], HA + 2, pre, sleep=8)
    A.reset()
    g.stamp(8)
    hloads(0); hloads(1)
    A('s_waitcnt vmcnt(16)\ns_barrier')
    for c in range(6): A(f'ds_read_b32 v{CS2+c}, v{T0+2} offset:{384 + 64*c}')
    for c in range(6): A(f'ds_read_b128 {vq(CS1+4*c)}, v{T0+3} offset:{64*c}')
    def sabs(a, k):
        r, off = g.SLOT[k]
        return (a * R1S if r == 1 else R2B + a * R2S) + off
    def slot2(ks): return sabs(ks // 5, ks % 5)
    Z1S = [5, 0, 1, 2, 3]
    def slot1(ks): return sabs(ks % 4, Z1S[ks // 4])
    def bread(n, slot):
        ks, c = divmod(n, 6)
        A(f'ds_read_b128 {vq(BR + 4 * (n % NBR))}, {lds(slot(ks) + 1024*c)}')
    def z1dma(b):
        r, off = g.SLOT[Z1S[b]]
        g.lin_dma(sL1 if r == 1 else sL2, off, sT3, 4*b*6144, 6, f'wz1{b}')
    LEAD = 9
    def gemm1(part, grp, extra, stopread=120):
        slot = slot2 if part else slot1; acc = ACC2 if part else ACC1
        def main():
            for ks in range(4 * grp, 4 * grp + 4):
                h = vq(HA + 4 * ks)
                for c in range(6):
                    n = 6 * ks + c; b = vq(BR + 4 * (n % NBR))
                    if c % 3 == 0: A.need(*[vq(BR + 4 * ((n + k) % NBR)) for k in range(3)])
                    cc = '0' if ks == 0 else vq(acc + 4*c)
                    A(f'v_mfma_f32_16x16x32_bf16 {vq(acc+4*c)}, {h if part else b}, {b if part else h}, {cc}')
                    if not part and n + LEAD in (72, 96):
                        A.waittag(f'wz1{(n + LEAD) // 24}'); A('s_barrier')
                    if n + LEAD < 120: bread(n + LEAD, slot)
                    if part and c == 1: A(f'v_mfma_f32_16x16x32_bf16 {vq(SUM)}, {h}, {vq(ON)}, {"0" if ks == 0 else vq(SUM)}')
                    if part and c == 4: A(f'v_mfma_f32_16x16x32_bf16 {vq(SQ)}, {h}, {h}, {"0" if ks == 0 else vq(SQ)}')
        m = A.capture(main); f = A.capture(extra)
        A.weave(m, f)
    for n in range(LEAD): bread(n, slot2)
    def hchk(grp, last):
        g.check(f'h{grp}', range(HA + 16*grp, HA + 16*grp + 16), T0, lambda: [hloads(k) for k in range(grp, last + 1)], sleep=2 if grp == 0 else 1)
    hchk(0, 1)
    g.stamp(9)
    gemm1(1, 0, lambda: (hloads(2), hchk(1, 2)), -1)
    gemm1(1, 1, lambda: (hloads(3), hchk(2, 3)), -1)
    gemm1(1, 2, lambda: (hloads(4), hchk(3, 4)), -1)
    gemm1(1, 3, lambda: (z1dma(0), hchk(4, 4)), -1)
    gemm1(1, 4, lambda: None, -1)
    A('s_barrier')
    g.stamp(10)
    R4, M4 = TT, TT + 4
    R1, M1 = TT + 8, TT + 9
    A(f'''v_and_b32 v{T0}, 3, v1
    v_cmp_eq_u32 vcc, 1, v{T0}
    v_cmp_eq_u32 {sp(sC)}, 2, v{T0}
    v_cmp_eq_u32 {sp(sC+2)}, 3, v{T0}
    v_and_b32 v{T0}, 15, v1
    v_lshrrev_b32 v{T0+1}, 2, v{T0}
    v_lshl_add_u32 v{T0}, v{T0+1}, 4, v{T0}
    v_lshlrev_b32 v{T0}, 2, v{T0}
    v_lshrrev_b32 v{T0+1}, 4, v1
    v_mul_u32_u24 v{T0+1}, 80, v{T0+1}
    v_cndmask_b32 v{T0+2}, v{SUM}, v{SUM+1}, vcc
    v_cndmask_b32 v{T0+3}, v{SQ}, v{SQ+1}, vcc
    v_cndmask_b32 v{T0+2}, v{T0+2}, v{SUM+2}, {sp(sC)}
    v_cndmask_b32 v{T0+3}, v{T0+3}, v{SQ+2}, {sp(sC)}
    v_cndmask_b32 v{T0+2}, v{T0+2}, v{SUM+3}, {sp(sC+2)}
    v_cndmask_b32 v{T0+3}, v{T0+3}, v{SQ+3}, {sp(sC+2)}
    v_mul_f32 v{T0+2}, {f32(-1/640)}, v{T0+2}
    v_mul_f32 v{T0+3}, {f32(1/640)}, v{T0+3}
    v_fma_f32 v{T0+3}, -v{T0+2}, v{T0+2}, v{T0+3}
    v_max_f32 v{T0+3}, 0, v{T0+3}
    v_add_f32 v{T0+3}, {f32(1e-5)}, v{T0+3}
    v_rsq_f32 v{T0+3}, v{T0+3}''')
    for i in range(4): A(f'ds_bpermute_b32 v{R4+i}, v{T0+1}, v{T0+3} offset:{4*i}')
    A(f'ds_bpermute_b32 v{R1}, v{T0}, v{T0+3}\nds_bpermute_b32 v{M1}, v{T0}, v{T0+2}')
    for i in range(4): A(f'v_mul_f32 v{M4+i}, {f32(-1/640)}, v{SUM+i}')
    c0 = 0.7978845608028654; l2e = math.log2(math.e)
    A(f's_mov_b32 s{sC+4}, {f32(-2*c0*l2e*0.044715)}\ns_mov_b32 s{sC+5}, {f32(-2*c0*l2e*0.044715)}')
    KP = T0
    def gelu(acc, tmp):
        for k in range(0, 24, 2): A(f'v_pk_mul_f32 {vp(tmp+k)}, {vp(acc+k)}, {vp(acc+k)}')
        for k in range(0, 24, 2): A(f'v_pk_fma_f32 {vp(tmp+k)}, {vp(tmp+k)}, {sp(sC+4)}, {vp(KP)} op_sel_hi:[1,1,0]')
        for k in range(0, 24, 2): A(f'v_pk_mul_f32 {vp(tmp+k)}, {vp(tmp+k)}, {vp(acc+k)}')
        for k in range(24): A(f'v_exp_f32 v{tmp+k}, v{tmp+k}')
        for k in range(0, 24, 2): A(f'v_pk_add_f32 {vp(tmp+k)}, {vp(tmp+k)}, 1.0 op_sel_hi:[1,0]')
        for k in range(24): A(f'v_rcp_f32 v{tmp+k}, v{tmp+k}')
        for k in range(0, 24, 2): A(f'v_pk_mul_f32 {vp(acc+k)}, {vp(acc+k)}, {vp(tmp+k)}')
    for c in range(6):
        cs = CS2 + (c & ~1); sel = c & 1
        for h in range(2):
            A(f'v_pk_fma_f32 {vp(ACC2+4*c+2*h)}, {vp(M4+2*h)}, {vp(cs)}, {vp(ACC2+4*c+2*h)} op_sel:[0,{sel},0] op_sel_hi:[1,{sel},1]')
    A(f'v_mov_b32 v{KP}, {f32(-2*c0*l2e)}')
    for c in range(6):
        for h in range(2): A(f'v_pk_mul_f32 {vp(ACC2+4*c+2*h)}, {vp(ACC2+4*c+2*h)}, {vp(R4+2*h)}')
    A.weave(A.capture(lambda: gelu(ACC2, BR)), A.capture(lambda: (z1dma(1), z1dma(2))), end=80)
    S1, S2 = SUM, SQ
    for h in range(2):
        A(f'v_pk_add_f32 {vp(S1+2*h)}, {vp(ACC2+2*h)}, {vp(ACC2+4+2*h)}\nv_pk_mul_f32 {vp(S2+2*h)}, {vp(ACC2+2*h)}, {vp(ACC2+2*h)}')
    for c in range(1, 6):
        for h in range(2):
            if c > 1: A(f'v_pk_add_f32 {vp(S1+2*h)}, {vp(S1+2*h)}, {vp(ACC2+4*c+2*h)}')
            A(f'v_pk_fma_f32 {vp(S2+2*h)}, {vp(ACC2+4*c+2*h)}, {vp(ACC2+4*c+2*h)}, {vp(S2+2*h)}')
    X4, Y4 = BR, BR + 4
    A(f's_mov_b32 vcc_lo, 0xaaaaaaaa\ns_mov_b32 vcc_hi, 0xaaaaaaaa')
    for i in range(4): A(f'v_cndmask_b32 v{Y4+i}, v{S2+i}, v{S1+i}, vcc')
    for i in range(4): A(f'v_cndmask_b32 v{X4+i}, v{S1+i}, v{S2+i}, vcc')
    for i in range(4): A(f'v_add_f32_dpp v{X4+i}, v{Y4+i}, v{X4+i} quad_perm:[1,0,3,2] row_mask:0xf bank_mask:0xf')
    for ror in (2, 4, 8):
        for i in range(4): A(f'v_add_f32_dpp v{X4+i}, v{X4+i}, v{X4+i} row_ror:{ror} row_mask:0xf bank_mask:0xf')
    A(f'''v_lshrrev_b32 v{T0+2}, 4, v1
    v_and_b32 v{T0+3}, 1, v1
    v_lshlrev_b32 v{T0+3}, 4, v{T0+3}
    v_lshl_add_u32 v{T0+2}, v{T0+2}, 5, v{T0+3}
    v_bfe_u32 v{T0+3}, v1, 1, 3
    v_lshl_add_u32 v{VZ}, v{T0+3}, 7, v{T0+2}
    s_lshl_b32 s{sB1}, s{sT2}, 10
    s_add_u32 s{sB1}, s{sB1}, {ZST}
    s_lshl_b32 s{sT0}, s{sJ}, 7
    s_add_u32 s{sT0}, s{sT0}, s{sB1}
    s_mov_b32 exec_lo, 0x00030003
    s_mov_b32 exec_hi, 0x00030003
    buffer_store_dwordx4 {vq(X4)}, v{T0+2}, {srd(rWS)}, s{sT0} offen sc1
    s_mov_b64 exec, -1''')
    g.stamp(11)
    A.waittag('wz12')
    A('s_barrier')
    for n in range(LEAD): bread(n, slot1)
    ZS = SUM
    def zsload(): A(f'buffer_load_dwordx4 {vq(ZS)}, v{VZ}, {srd(rWS)}, s{sB1} offen sc1')
    for grp in range(5):
        gemm1(0, grp, [lambda: z1dma(3), lambda: z1dma(4), lambda: None, zsload, lambda: None][grp], 72)
    g.check('zs', range(ZS, ZS + 4), T0 + 1, zsload, sleep=1)
    g.stamp(12)
    for ror in (2, 4, 8):
        for i in range(4): A(f'v_add_f32_dpp v{ZS+i}, v{ZS+i}, v{ZS+i} row_ror:{ror} row_mask:0xf bank_mask:0xf')
    A(f'v_mov_b32 v{T0+1}, {f32(1/768)}')
    for i in range(4): A(f'v_mul_f32_dpp v{M4+i}, v{ZS+i}, v{T0+1} quad_perm:[0,0,2,2] row_mask:0xf bank_mask:0xf')
    for i in range(4): A(f'v_mul_f32_dpp v{R4+i}, v{ZS+i}, v{T0+1} quad_perm:[1,1,3,3] row_mask:0xf bank_mask:0xf')
    for h in range(2): A(f'v_pk_fma_f32 {vp(R4+2*h)}, {vp(M4+2*h)}, {vp(M4+2*h)}, {vp(R4+2*h)} neg_lo:[1,0,0] neg_hi:[1,0,0]')
    for i in range(4): A(f'v_max_f32 v{R4+i}, 0, v{R4+i}')
    for i in range(4): A(f'v_add_f32 v{R4+i}, {f32(1e-5)}, v{R4+i}')
    for i in range(4): A(f'v_rsq_f32 v{R4+i}, v{R4+i}')
    A(f'''v_and_b32 v{T0+1}, 15, v1
    v_bfe_u32 v{T0+2}, v1, 4, 1
    v_lshlrev_b32 v{T0+2}, 10, v{T0+2}
    v_lshl_add_u32 v{T0+1}, v{T0+1}, 4, v{T0+2}
    v_lshrrev_b32 v{T0+2}, 5, v1
    v_lshl_add_u32 v{T0+1}, v{T0+2}, 8, v{T0+1}
    s_mul_i32 s{sB2}, s{sJ}, 393216
    s_add_u32 s{sB2}, s{sB2}, {Z2N}
    s_lshr_b32 s{sT0}, s{sT2}, 1
    s_lshl_b32 s{sT0}, s{sT0}, 11
    s_and_b32 s{sT1}, s{sW}, 1
    s_lshl_b32 s{sT1}, s{sT1}, 9
    s_add_u32 s{sT0}, s{sT0}, s{sT1}
    s_add_u32 s{sOFF}, s{sT0}, s{sB2}''')
    for h in range(2): A(f'v_pk_mul_f32 {vp(M4+2*h)}, {vp(M4+2*h)}, {vp(R4+2*h)} neg_lo:[1,0] neg_hi:[1,0]')
    for p in range(3):
        o = BR + 4 * p
        for k in range(4): A(f'v_pk_fma_f32 {vp(ACC2+8*p+2*k)}, {vp(ACC2+8*p+2*k)}, {vp(R4+2*(k&1))}, {vp(M4+2*(k&1))}')
        for k in range(4): A(f'v_cvt_pk_bf16_f32 v{o+k}, v{ACC2+8*p+2*k}, v{ACC2+8*p+2*k+1}')
    for p in range(3):
        o = BR + 4 * p
        A(f'v_permlane16_swap_b32 v{o}, v{o+2}\nv_permlane16_swap_b32 v{o+1}, v{o+3}')
        A(f'buffer_store_dwordx4 {vq(o)}, v{T0+1}, {srd(rWS)}, s{sOFF} offen sc1', tag='z2st')
        if p < 2: A(f's_add_u32 s{sOFF}, s{sOFF}, 131072')
    g.stamp(13)
    A('s_barrier')
    A(f'''s_mul_i32 s{sT3}, s{sJ3}, 122880
    s_mul_i32 s{sT1}, s{sW}, 5120
    s_add_u32 s{sT3}, s{sT3}, s{sT1}
    s_add_u32 s{sT3}, s{sT3}, {WOT}''')
    def wodma(b0, b1):
        for b in range(b0, b1): g.lin_dma(sT1, b*20480, sT3, b*20480, 5, 'wo')
    WO1 = 3
    def z1epi():
        for k in range(0, 24, 2): A(f'v_pk_fma_f32 {vp(ACC1+k)}, {vp(CS1+k)}, {vp(R1)}, {vp(ACC1+k)} op_sel:[0,1,0] op_sel_hi:[1,1,1]')
        for k in range(0, 24, 2): A(f'v_pk_mul_f32 {vp(ACC1+k)}, {vp(ACC1+k)}, {vp(R1)} op_sel_hi:[1,0]')
        gelu(ACC1, BR + 16)
    A.weave(A.capture(z1epi), A.capture(lambda: wodma(0, WO1)))
    if g.dump:
        A(f'''v_lshlrev_b32 v{T0}, 4, v1
        s_lshl_b32 s{sT0}, s2, 2
        s_add_u32 s{sT0}, s{sT0}, s{sW}
        s_mul_i32 s{sT0}, s{sT0}, 6144
        s_add_u32 s{sT0}, s{sT0}, {DBG}''')
        for c in range(6):
            A(f'buffer_store_dwordx4 {vq(ACC1+4*c)}, v{T0}, {srd(rWS)}, s{sT0} offen\ns_add_u32 s{sT0}, s{sT0}, 1024')
    if g.stop <= 2:
        A('s_waitcnt vmcnt(0)'); g.finish_early(); return

    RING, NG = 4, 5
    ACC = (176, 208); RT = 112
    VL, VRW, VRR, BS = VL16, 84, 87, 100
    RB = 122880
    A(f'''s_lshl_b32 s{sT0}, s{sW}, 15
    s_add_u32 s{sB2}, s{sB2}, s{sT0}
    v_lshlrev_b32 v{BS}, 16, v{VBS}''')
    for r in range(1, 4):
        A(f'''s_add_u32 s{sT0}, s{sW}, {r}
        s_and_b32 s{sT0}, s{sT0}, 3
        s_mul_i32 s{sT0}, s{sT0}, 6144
        s_add_u32 s{sT0}, s{sT0}, {RB + (r-1)*2048}
        v_add_u32 v{VRW+r-1}, s{sT0}, v{VL}''')
    A(f'''s_mul_i32 s{sT0}, s{sW}, 6144
    s_add_u32 s{sT0}, s{sT0}, {RB}
    v_add_u32 v{VRR}, s{sT0}, v{VL}
    s_mul_i32 s{sB1}, s{sT2}, 24576
    s_mul_i32 s{sT0}, s{sJ}, 3072
    s_add_u32 s{sB1}, s{sB1}, s{sT0}
    s_add_u32 s{sB1}, s{sB1}, {P}''')
    g.stamp(20)
    A.waittag('z2st')
    def zl(G):
        if G >= 24: return
        p, q = divmod(G, 8)
        A(f's_add_u32 s{sRL}, s{sB2}, {p*131072 + q*4096}')
        for k in range(4): A(f'buffer_load_dwordx4 {vq(RING + 16*(G % NG) + 4*k)}, v{VL}, {srd(rWS)}, s{sRL} offen offset:{1024*k} sc1')
    def zchk(G, last):
        if G >= 24: return
        g.check(f'z{G}', range(RING + 16*(G % NG), RING + 16*(G % NG) + 16), T0, lambda: [zl(k) for k in range(G, last + 1)], sleep=1)
    def red_w(p):
        a = ACC[p & 1]
        for r in range(1, 4):
            for c in range(2): A(f'ds_write_b128 v{VRW+r-1}, {vq(a + 8*r + 4*c)} offset:{1024*c}')
    def red_r(p):
        A('s_waitcnt lgkmcnt(0)\ns_barrier')
        for k in range(6): A(f'ds_read_b128 {vq(RT+4*k)}, v{VRR} offset:{1024*k}')
    def red_e(p):
        a = ACC[p & 1]
        for k in range(0, 8, 2): A(f'v_pk_add_f32 {vp(a+k)}, {vp(a+k)}, {vp(BS)} op_sel_hi:[1,0]')
        for r in range(3):
            for k in range(0, 8, 2): A(f'v_pk_add_f32 {vp(a+k)}, {vp(a+k)}, {vp(RT+8*r+k)}')
        for k in range(0, 8, 2): A(f'v_pk_mul_f32 {vp(a+k)}, {vp(a+k)}, {vp(ACC1+8*p+k)}')
        for k in range(4): A(f'v_cvt_pk_bf16_f32 v{136+k}, v{a+2*k}, v{a+2*k+1}')
        A(f'buffer_store_dwordx4 {vq(136)}, v{VL}, {srd(rWS)}, s{sB1} offen offset:{1024*p} sc1', tag='pst')
    for G in range(NG - 1): zl(G)
    zchk(0, NG - 2)
    g.stamp(14)
    for G in range(24):
        p, q = divmod(G, 8); a = ACC[p & 1]
        def main():
            for kk in range(2):
                ks = 2*q + kk
                for c in range(2):
                    for rt in range(4):
                        d = vq(a + 8*rt + 4*c)
                        A(f'v_mfma_f32_16x16x32_bf16 {d}, {vq(RING + 16*(G % NG) + 8*kk + 4*c)}, {aq(64*rt + 4*ks)}, {"0" if ks == 0 else d}')
        def extra():
            zl(G + NG - 1)
            if p > 0:
                if q == 0: red_w(p - 1)
                if q == 1: red_r(p - 1)
                if q == 2: red_e(p - 1)
                if q == 5: A('s_barrier')
            zchk(G + 1, min(23, G + NG - 1))
        A.weave(A.capture(main), A.capture(extra))
    g.stamp(15)
    red_w(2); red_r(2); red_e(2)
    g.stamp(16)
    if g.stop <= 3:
        A('s_waitcnt vmcnt(0)'); g.finish_early(); return

    wodma(WO1, 6)
    PF, OA, HR = 4, 108, 128
    VP_, VHH, VW0, VO = VL16, 100, 101, 104
    BV = 144
    A(f'''v_mov_b32 v{VHH}, v{VH}
    v_mov_b32 v{VW0}, v{VB}
    v_mov_b32 v{VW0+1}, v{VB+1}
    v_mov_b32 v{VW0+2}, v{VB+2}
    s_lshl_b32 s{sT0}, s{sI3}, 2
    s_add_u32 s{sT2}, s{sT0}, s{sW}
    s_mul_i32 s{sB1}, s{sT2}, 24576
    s_add_u32 s{sB1}, s{sB1}, {P}
    s_lshl_b32 s{sB0}, s{sT2}, 7
    s_mul_i32 s{sT0}, s{sJ3}, {20*16384}
    s_add_u32 s{sB0}, s{sB0}, s{sT0}
    s_add_u32 s{sB0}, s{sB0}, {H}''')
    def hres():
        for c in range(5):
            A(f's_add_u32 s{sRL}, s{sB0}, {c*65536}\nbuffer_load_dwordx2 {vp(HR+2*c)}, v{VHH}, {srd(rWS)}, s{sRL} offen sc1')
    NA = 20 * WO1
    def breg(n):
        if n < NA: return 'a', 4*n
        return 'v', BV + 4*((n - NA) % 28)
    def wread(n):
        k, r = breg(n); off = 1024*n
        A(f'ds_read_b128 {k}[{r}:{r+3}], v{VW0 + off // BSTEP} offset:{off % BSTEP}')
    for n in range(NA): wread(n)
    A.waittag('pst')
    g.stamp(17)
    hres()
    def pl(G):
        A(f's_add_u32 s{sRL}, s{sB1}, {G*4096}')
        for k in range(4): A(f'buffer_load_dwordx4 {vq(PF + 16*G + 4*k)}, v{VP_}, {srd(rWS)}, s{sRL} offen offset:{1024*k} sc1')
    for G in range(3): pl(G)
    A.waittag('wo')
    A('s_barrier')
    g.check('hr', range(HR, HR + 10), 140, hres, sleep=1)
    for c in range(5):
        for k in range(2):
            A(f'v_lshlrev_b32 v{OA+4*c+2*k}, 16, v{HR+2*c+k}\nv_and_b32 v{OA+4*c+2*k+1}, 0xffff0000, v{HR+2*c+k}')
    A(f'''v_and_b32 v140, 15, v1
    v_mul_u32_u24 v140, 1280, v140
    v_lshrrev_b32 v141, 4, v1
    v_lshl_add_u32 v{VO+1}, v141, 3, v140
    v_bfe_u32 v141, v1, 4, 1
    v_lshl_add_u32 v140, v141, 5, v140
    v_lshrrev_b32 v141, 5, v1
    v_lshl_add_u32 v{VO}, v141, 4, v140
    s_mul_i32 s{sT0}, s{sT2}, {16*1280}
    s_mul_i32 s{sT1}, s{sJ3}, 160
    s_add_u32 s{sB2}, s{sT0}, s{sT1}''')
    def pchk(G):
        if G < 6: g.check(f'p{G}', range(PF + 16*G, PF + 16*G + 16), 140, lambda: [pl(k) for k in range(G, min(6, G + 3))], sleep=1)
    pchk(0)
    A('s_waitcnt lgkmcnt(0)')
    g.stamp(18)
    for G in range(6):
        def main():
            for ks in range(4*G, 4*G + 4):
                for c in range(5):
                    n = 5*ks + c; k, r = breg(n)
                    if n >= NA and c == 0: A.need(*['%s[%d:%d]' % (breg(n+e)[0], breg(n+e)[1], breg(n+e)[1]+3) for e in range(5)])
                    A(f'v_mfma_f32_16x16x32_bf16 {vq(OA+4*c)}, {k}[{r}:{r+3}], {vq(PF+4*ks)}, {vq(OA+4*c)}')
                    if n >= NA and n + 28 < 120: wread(n + 28)
        def extra():
            if G + 3 < 6: pl(G + 3)
            lo, hi = [(60, 70), (70, 80), (80, 88), (0, 0), (0, 0), (0, 0)][G]
            for n in range(lo, hi): wread(n)
            pchk(G + 1)
        A.weave(A.capture(main), A.capture(extra))
    g.stamp(19)
    OO = 128
    for c in range(5):
        for k in range(2): A(f'v_cvt_pk_bf16_f32 v{OO+2*c+k}, v{OA+4*c+2*k}, v{OA+4*c+2*k+1}')
    for pr in range(2):
        o = OO + 4*pr
        A(f'v_permlane16_swap_b32 v{o}, v{o+2}\nv_permlane16_swap_b32 v{o+1}, v{o+3}')
        A(f'buffer_store_dwordx4 {vq(o)}, v{VO}, {srd(rOUT)}, s{sB2} offen offset:{64*pr}')
    A(f'buffer_store_dwordx2 {vp(OO+8)}, v{VO+1}, {srd(rOUT)}, s{sB2} offen offset:128')
    A(f'''s_or_b32 s{sT0}, s2, s{sW}
    s_cmp_lg_u32 s{sT0}, 0
    s_cbranch_scc1 L_end
    v_mov_b32 v140, 0
    s_mov_b64 exec, 1
    buffer_store_dword v2, v140, {srd(rWS)}, 0 offen sc1
    s_mov_b64 exec, -1''')
```

```python
import sys, struct, math
from asmlib import Asm, I

NAME = 'sequential_preLN__ssm_conv_s4__mixer_gmlp__prompt'
def f32(x): return '0x%08x' % struct.unpack('<I', struct.pack('<f', x))[0]

EPOCH = 0
FLG = 0x8000
CS = 0xA000
STAMP = 0x20000
CLR = 0x100000
ZST = CLR
H = ZST + 0x20000
Z2N = H + 0x280000
P = Z2N + 0x300000
XG = P + 0x300000
WIT = XG + 160 * 32768
WOT = WIT + 16 * 122880
assert Z2N - CLR == 96 * 7 * 4096 and XG - Z2N == 256 * 6 * 4096
DBG = 0x1400000
assert WOT + 8 * 122880 <= DBG
WS_BYTES = 0x2000000
TAGC = 0x9E3779B1
SPIN = 1 << 16

R1S = 18432
CSTR = 4160
L_TAB = 16640
R2B = 4 * R1S
R2S = 22528
L_U = 16384
L_Y = 14336
L_CS = 6144
KST = 288

pX, pAre, pAim, pBre, pBim, pCre, pCim, pLdt, pDsk, pBx, pWin, pWsp, pBsp, pWout, pOut, pDbg, pWs = [4 + 2 * k for k in range(17)]
rX, rWIN, rWSP, rWOUT, rOUT, rWS = 40, 44, 48, 52, 56, 60
sW, sXC, sIDX, sI, sJ, sI3, sJ3, sL1 = 64, 65, 66, 67, 68, 69, 70, 71
sL2 = 95
sT0, sT1, sT2, sT3 = 72, 73, 74, 75
sSPIN = 76
sWSPO = 77
sOFF = 78
sC = 80
sSTAMP = 88
sONES = 90
sRL = 91
sB0, sB1, sB2 = 92, 93, 94
sSPO = 98
def sp(n): return f's[{n}:{n+1}]'
def srd(n): return f's[{n}:{n+3}]'
def vp(n): return f'v[{n}:{n+1}]'
def vq(n): return f'v[{n}:{n+3}]'
def aq(n): return f'a[{n}:{n+3}]'

class Gen:
    def __init__(self, stop=99, stamps=False, dump=False, amp=None):
        self.A = Asm(); self.stop = stop; self.stamps = stamps; self.dump = dump
        self.stubs = []; self.nst = 0; self.amp = amp; self.role = 'all'
    def stamp(self, k):
        if self.amp:
            role, kk = self.amp.split(':')
            if k == 0 or (k == int(kk) and role in (self.role, 'all')):
                self.A(f's_memrealtime {sp(sSTAMP)}\ns_waitcnt lgkmcnt(0)\nv_writelane_b32 v3, s{sSTAMP}, {min(k, 1)}')
            return
        if not self.stamps: return
        A = self.A
        A(f's_memrealtime {sp(sSTAMP)}\ns_memtime s[96:97]\ns_waitcnt lgkmcnt(0)\nv_writelane_b32 v3, s{sSTAMP}, {k}\nv_writelane_b32 v3, s96, {k+32}')
    def stamp_out(self):
        if self.amp:
            self.A(f'''v_readlane_b32 s{sT0}, v3, 0
            v_readlane_b32 s{sT1}, v3, 1
            s_nop 3
            s_cmp_eq_u32 s{sT1}, 0
            s_cbranch_scc1 L_exit
            s_sub_u32 s{sT1}, s{sT1}, s{sT0}
            s_mul_i32 s{sT1}, s{sT1}, 20
            s_min_u32 s{sT1}, s{sT1}, 200000
            L_amp:
            s_memrealtime {sp(sSTAMP)}
            s_waitcnt lgkmcnt(0)
            s_sub_u32 s{sT2}, s{sSTAMP}, s{sT0}
            s_cmp_lt_u32 s{sT2}, s{sT1}
            s_cbranch_scc1 L_amp''')
            return
        if not self.stamps: return
        A = self.A
        A(f'''s_lshl_b32 s{sT0}, s2, 2
        s_add_u32 s{sT0}, s{sT0}, s{sW}
        s_lshl_b32 s{sT0}, s{sT0}, 8
        s_add_u32 s{sT0}, s{sT0}, {STAMP}
        v_lshlrev_b32 v4, 2, v1
        v_writelane_b32 v3, s{sSPIN}, 31
        buffer_store_dword v3, v4, {srd(rWS)}, s{sT0} offen''')
    def finish_early(self):
        self.A('s_branch L_end')

    def _sent(self, regs, tmp):
        A = self.A; regs = list(regs)
        if len(regs) >= 3:
            A(f'v_max3_u32 v{tmp}, v{regs[0]}, v{regs[1]}, v{regs[2]}'); regs = regs[3:]
        else:
            A(f'v_max_u32 v{tmp}, v{regs[0]}, v{regs[1]}'); regs = regs[2:]
        while len(regs) >= 2:
            A(f'v_max3_u32 v{tmp}, v{tmp}, v{regs[0]}, v{regs[1]}'); regs = regs[2:]
        if regs: A(f'v_max_u32 v{tmp}, v{tmp}, v{regs[0]}')
        A(f'v_cmp_eq_u32 vcc, -1, v{tmp}')
    def _tag(self, regs, tmp):
        A = self.A
        A(f'v_xor_b32 v{tmp}, v{regs[0]}, v2')
        for r in regs[1:]:
            A(f'v_bitop3_b32 v{tmp}, v{r}, v2, v{tmp} bitop3:0xbe')
        A(f'v_cmp_ne_u32 vcc, 0, v{tmp}')
    def check(self, name, regs, tmp, reload_fn, sleep=2, kind='sent'):
        A = self.A
        test = self._sent if kind == 'sent' else self._tag
        A.need(*[f'v{r}' for r in regs])
        test(regs, tmp)
        A.branch_label(f's_cbranch_vccnz L_stub_{name}', f'L_ok_{name}')
        self.stubs.append((name, reload_fn, sleep, lambda: test(regs, tmp)))
    def tag_check(self, name, regs, tmp, reload_fn, sleep=4):
        self.check(name, regs, tmp, reload_fn, sleep, 'tag')
    def emit_stubs(self):
        A = self.A
        for name, fn, sleep, test in self.stubs:
            A.reset()
            A.label(f'L_stub_{name}')
            A(f'''s_waitcnt vmcnt(0)
            s_sub_u32 s{sSPIN}, s{sSPIN}, 1
            s_cmp_lt_i32 s{sSPIN}, 0
            s_cbranch_scc1 L_ok_{name}''')
            if sleep: A(f's_sleep {sleep}')
            fn()
            A('s_waitcnt vmcnt(0)')
            test()
            A(f's_cbranch_vccnz L_stub_{name}\ns_branch L_ok_{name}')

    def cmul(self, D, X, Y, T, conj=False):
        A = self.A
        A(f'v_pk_mul_f32 {vp(T)}, {vp(X)}, {vp(Y)} op_sel:[0,0] op_sel_hi:[0,1]')
        A(f'v_pk_fma_f32 {vp(D)}, {vp(X)}, {vp(Y)}, {vp(T)} op_sel:[1,1,0] op_sel_hi:[1,0,1] neg_lo:[1,0,0]' + (' neg_hi:[1,0,1]' if conj else ''))

    def prologue(self):
        A = self.A
        A(f'''s_cmp_ge_u32 s2, 256
        s_cbranch_scc1 L_exit
        s_load_dwordx16 s[4:19], s[0:1], 0
        s_load_dwordx16 s[20:35], s[0:1], 64
        s_load_dwordx2 s[36:37], s[0:1], 128
        v_lshrrev_b32 v2, 6, v0
        v_and_b32 v1, 63, v0
        v_readfirstlane_b32 s{sW}, v2
        v_mov_b32 v3, 0
        s_and_b32 s{sXC}, s2, 7
        s_lshr_b32 s{sIDX}, s2, 3
        s_lshr_b32 s{sT0}, s{sXC}, 1
        s_lshl_b32 s{sT0}, s{sT0}, 3
        s_and_b32 s{sT1}, s{sIDX}, 7
        s_add_u32 s{sI}, s{sT0}, s{sT1}
        s_and_b32 s{sT0}, s{sXC}, 1
        s_lshl_b32 s{sT0}, s{sT0}, 2
        s_lshr_b32 s{sT1}, s{sIDX}, 3
        s_add_u32 s{sJ}, s{sT0}, s{sT1}
        s_lshl_b32 s{sT0}, s{sXC}, 2
        s_and_b32 s{sT1}, s{sIDX}, 3
        s_add_u32 s{sI3}, s{sT0}, s{sT1}
        s_lshr_b32 s{sJ3}, s{sIDX}, 2
        s_mul_i32 s{sL1}, s{sW}, {R1S}
        s_mul_i32 s{sL2}, s{sW}, {R2S}
        s_add_u32 s{sL2}, s{sL2}, {R2B}
        s_mov_b32 s{sSPIN}, {SPIN}
        s_mov_b32 s{sONES}, 0x3f803f80''')
        for r, n in ((rX, 2048 * 1280), (rWIN, 640 * 3072), (rWSP, 2048 * 4096 + 4096), (rWOUT, 768 * 1280), (rOUT, 2048 * 1280), (rWS, WS_BYTES)):
            A(f's_mov_b32 s{r+2}, {n}\ns_mov_b32 s{r+3}, 0x20000')
        self.stamp(0)
        A('s_waitcnt lgkmcnt(0)')
        for r, p in ((rX, pX), (rWIN, pWin), (rWOUT, pWout), (rOUT, pOut), (rWS, pWs)):
            A(f's_mov_b32 s{r}, s{p}\ns_mov_b32 s{r+1}, s{p+1}')
        A(f's_sub_u32 s{rWSP}, s{pWsp}, 4096\ns_subb_u32 s{rWSP+1}, s{pWsp+1}, 0')
        A(f's_cmp_lt_u32 s{sIDX}, 12\ns_cbranch_scc1 L_helper')

    VSP = 100
    VL16 = 106
    FA = 107
    VT16 = 109
    def common_consts(self, t):
        A = self.A; VSP = self.VSP
        A(f'''v_lshrrev_b32 v{t}, 3, v1
        v_and_b32 v{t+1}, 7, v1
        v_lshrrev_b32 v{t+2}, 1, v{t}
        v_xor_b32 v{t+1}, v{t+1}, v{t+2}
        v_lshlrev_b32 v{t+1}, 4, v{t+1}
        v_lshl_add_u32 v{t+2}, v{t}, 12, v{t+1}
        v_xor_b32 v{t+3}, 64, v{t+2}
        v_add_u32 v{VSP}, 4096, v{t+2}
        v_add_u32 v{VSP+1}, {4096 + 32768 - 1024}, v{t+3}
        v_add_u32 v{VSP+2}, {4096 + 128 - 2048}, v{t+2}
        v_add_u32 v{VSP+3}, {4096 + 32768 + 128 - 3072}, v{t+3}''')
        A(f'''v_and_b32 v{t}, 15, v1
        v_lshrrev_b32 v{t+1}, 4, v1
        v_lshrrev_b32 v{t+2}, 1, v{t}
        v_xor_b32 v{t+1}, v{t+1}, v{t+2}
        v_lshlrev_b32 v{t+1}, 4, v{t+1}
        v_lshl_add_u32 v{t+1}, v{t}, 7, v{t+1}
        v_xor_b32 v{t+2}, 64, v{t+1}
        v_add_u32 v{VSP+4}, s{sL2}, v{t+1}
        v_add_u32 v{VSP+5}, s{sL2}, v{t+2}''')
        A(f'''s_lshl_b32 s{sWSPO}, s{sI}, 18
        s_lshl_b32 s{sT0}, s{sW}, 10
        s_add_u32 s{sWSPO}, s{sWSPO}, s{sT0}
        v_lshlrev_b32 v{self.VL16}, 4, v1''')
        va = self.FA
        A(f'''v_lshlrev_b32 v{va}, 6, v1
        v_and_b32 v{va+1}, 31, v1
        v_lshlrev_b32 v{va+1}, 6, v{va+1}
        v_add_u32 v{va}, {FLG}, v{va}
        v_add_u32 v{va+1}, {FLG + 4096}, v{va+1}''')

    def clear(self, base, sidx, n, d):
        A = self.A
        A(f's_mul_i32 s{sOFF}, s{sidx}, {n*4096}\ns_add_u32 s{sOFF}, s{sOFF}, {base}')
        for k in range(n):
            A(f'buffer_store_dwordx4 {vq(d)}, v{self.VT16}, {srd(rWS)}, s{sOFF} offen sc1')
            if k < n - 1: A(f's_add_u32 s{sOFF}, s{sOFF}, 4096')

    def wsp_touch(self, t):
        A = self.A
        A(f'''s_and_b32 s{sT0}, s{sJ}, 3
        s_lshl_b32 s{sT0}, s{sT0}, 16
        s_lshl_b32 s{sT1}, s{sI}, 18
        s_add_u32 s{sT0}, s{sT0}, s{sT1}
        s_add_u32 s{sT0}, s{sT0}, 4096
        v_lshlrev_b32 v{t}, 7, v0
        buffer_load_dword v{t+1}, v{t}, {srd(rWSP)}, s{sT0} offen
        s_add_u32 s{sT0}, s{sT0}, 32768
        buffer_load_dword v{t+1}, v{t}, {srd(rWSP)}, s{sT0} offen''')

    def wsp_dma(self, hb):
        A = self.A; VSP = self.VSP
        rt = hb >> 1
        if hb & 1: A(f's_add_u32 s{sSPO}, s{sSPO}, 256')
        else:
            A(f'''s_add_u32 s{sSPO}, s{sW}, {rt}
            s_and_b32 s{sSPO}, s{sSPO}, 3
            s_lshl_b32 s{sSPO}, s{sSPO}, 16
            s_add_u32 s{sSPO}, s{sSPO}, s{sWSPO}''')
        for u in range(2):
            A(f's_add_u32 m0, s{sL2}, {(hb & 1) * 8192 + u * 4096}')
            if u: A(f's_add_u32 s{sSPO}, s{sSPO}, 256')
            for n in range(4):
                A(f'buffer_load_dwordx4 v{VSP+n}, {srd(rWSP)}, s{sSPO} offen offset:{1024*n} lds', tag=f'wsp{hb}')
    def wsp_read(self, hb):
        A = self.A; VSP = self.VSP
        rt = hb >> 1
        A.waittag(f'wsp{hb}')
        for kp in range(4):
            for h in range(2):
                ks = (hb & 1) * 8 + kp * 2 + h
                A(f'ds_read_b128 {aq(rt*64 + ks*4)}, v{VSP+4+h} offset:{(hb & 1) * 8192 + kp * 2048}', tag=f'wspr{hb}')

    def lin_dma(self, sl, loff, sg, goff, n, tag):
        A = self.A
        for k in range(n):
            if k % 4 == 0:
                A(f's_add_u32 m0, s{sl}, {loff + 1024*k}\ns_add_u32 s{sOFF}, s{sg}, {goff + 1024*k}')
            A(f'buffer_load_dwordx4 v{self.VL16}, {srd(rWS)}, s{sOFF} offen offset:{1024*(k % 4)} sc1 lds', tag=tag)
    SLOT = [(2, 0), (2, 8192), (1, 0), (1, 6144), (1, 12288), (2, L_Y)]
    def wz2_base(self):
        self.A(f'''s_mul_i32 s{sT3}, s{sJ}, 122880
        s_mul_i32 s{sT0}, s{sW}, 30720
        s_add_u32 s{sT3}, s{sT3}, s{sT0}
        s_add_u32 s{sT3}, s{sT3}, {WIT + 8*122880}''')
    def wz2_dma(self, k, n=1):
        r, off = self.SLOT[k]
        self.lin_dma(sL1 if r == 1 else sL2, off, sT3, 6144*k, 6*n, 'wz2')
    def cs_dma(self, t):
        A = self.A
        A(f'''v_min_u32 v{t}, 47, v1
        v_lshlrev_b32 v{t}, 4, v{t}
        v_add_u32 v{t+1}, {3072 - 384}, v{t}
        v_cmp_gt_u32 vcc, 24, v1
        s_mul_i32 s{sOFF}, s{sJ}, 384
        s_add_u32 s{sOFF}, s{sOFF}, {CS}
        v_cndmask_b32 v{t}, v{t+1}, v{t}, vcc
        s_add_u32 m0, s{sL2}, {L_CS}
        s_nop 0
        buffer_load_dwordx4 v{t}, {srd(rWS)}, s{sOFF} offen sc1 lds''', tag='wz2')

    def flag_load(self, d):
        va = self.FA
        self.A(f'''buffer_load_dword v{d}, v{va}, {srd(rWS)}, 0 offen sc1
        buffer_load_dword v{d+1}, v{va+1}, {srd(rWS)}, 0 offen sc1''')

    def conv_role(self):
        A = self.A
        XF, XR = 4, 36
        PR = 52
        DSK = 68
        SR, TW, EX, E3, SEL, CW, CA, CB, UW, YW, YR = 74, 78, 81, 83, 92, 94, 95, 96, 97, 98, 99
        SA = self.VT16
        FD = 110
        t = 112
        A(f'''s_mul_i32 s{sT0}, s{sXC}, 20
        s_add_u32 s{sT0}, s{sT0}, s{sIDX}
        s_sub_u32 s{sT2}, s{sT0}, 12
        s_lshl_b32 s{sT0}, s{sT2}, 2
        s_add_u32 s{sT0}, s{sT0}, s{sW}
        s_mul_i32 s{sT1}, s{sT0}, 384
        v_lshl_add_u32 v{t}, v1, 2, s{sT1}
        v_lshl_add_u32 v{t+1}, v1, 1, s{sT1}
        s_lshl_b32 s{sT0}, s{sT0}, 1
        v_mov_b32 v{t+2}, s{sT0}
        global_load_ushort v{PR+12}, v{t+2}, {sp(pLdt)}''')
        ptrs = (pAre, pAim, pBre, pBim, pCre, pCim)
        for k, p in enumerate(ptrs): A(f'global_load_dword v{PR+k}, v{t}, {sp(p)}')
        for k, p in enumerate(ptrs): A(f'global_load_ushort v{PR+6+k}, v{t+1}, {sp(p)} offset:256')
        A(f'global_load_ushort v{DSK}, v{t+2}, {sp(pDsk)}')
        A(f'v_mov_b32 v{t+3}, 0\nbuffer_load_dword v2, v{t+3}, {srd(rWS)}, 0 offen sc1')
        A(f'''s_lshl_b32 s79, s{sT2}, 14
        s_add_u32 s79, s79, {H}
        s_lshl_b32 s{sB0}, s{sT2}, 15
        s_add_u32 s{sB0}, s{sB0}, {XG}
        v_lshlrev_b32 v{SA}, 4, v0''')
        self.common_consts(t)
        A(f'''v_and_b32 v{t}, 15, v1
        v_lshrrev_b32 v{t+1}, 4, v1
        v_mul_u32_u24 v{t+2}, {KST}, v{t}
        v_lshl_add_u32 v{t+2}, v{t+1}, 4, v{t+2}
        v_add_u32 v{SR}, s{sL1}, v{t+2}''')
        A(f'''s_add_u32 s{sT0}, s{sL1}, {L_TAB}
        v_lshlrev_b32 v{t+2}, 3, v{t+1}
        v_lshl_add_u32 v{TW}, v{t}, 5, v{t+2}
        v_add_u32 v{TW}, s{sT0}, v{TW}
        v_lshl_add_u32 v{t+2}, v{t}, 4, v{t+2}
        v_lshlrev_b32 v{t+3}, 7, v{t+1}
        v_lshl_add_u32 v{t+4}, v{t}, 3, v{t+3}
        v_cmp_gt_u32 vcc, 32, v1
        v_lshl_add_u32 v{t+3}, v{t}, 2, v{t+3}
        s_add_u32 s{sT1}, s{sT0}, 1024
        v_cndmask_b32 v{t+2}, v{t+4}, v{t+2}, vcc
        v_add_u32 v{TW+1}, s{sT0}, v{t+2}
        v_add_u32 v{TW+2}, s{sT1}, v{t+3}''')
        A(f'''v_and_b32 v{t+2}, 3, v1
        v_mul_u32_u24 v{t+2}, {CSTR}, v{t+2}
        v_lshrrev_b32 v{t+3}, 2, v{t}
        v_lshlrev_b32 v{t+3}, 3, v{t+3}
        v_sub_u32 v{t+2}, v{t+2}, v{t+3}
        v_lshl_add_u32 v{t+2}, v{t+1}, 4, v{t+2}
        s_add_u32 s{sT1}, s{sL1}, {24 + 16}
        v_add_u32 v{CA}, s{sT1}, v{t+2}
        v_lshlrev_b32 v{t+2}, 4, v{t+1}
        v_lshl_add_u32 v{t+2}, v{t}, 5, v{t+2}
        s_add_u32 s{sT1}, s{sL2}, {L_U}
        v_add_u32 v{CB}, s{sT1}, v{t+2}''')
        A(f'''v_lshl_add_u32 v{t+2}, v{t}, 2, v{t+1}
        v_bfe_u32 v{t+3}, v{t}, 1, 2
        v_xor_b32 v{t+2}, v{t+2}, v{t+3}
        s_add_u32 s{sT1}, s{sL2}, {L_Y}
        v_lshl_add_u32 v{YW}, v{t+2}, 4, s{sT1}
        v_lshrrev_b32 v{t+2}, 1, v0
        v_bfe_u32 v{t+3}, v0, 4, 2
        v_xor_b32 v{t+2}, v{t+2}, v{t+3}
        v_and_b32 v{t+3}, 1, v0
        v_lshlrev_b32 v{t+3}, 3, v{t+3}
        v_lshl_add_u32 v{t+2}, v{t+2}, 4, v{t+3}
        v_add_u32 v{YR}, {R2B + L_Y}, v{t+2}
        v_lshlrev_b32 v{UW}, 2, v0
        v_add_u32 v{UW}, {R2B + L_U + 480}, v{UW}
        s_add_u32 s{sT1}, s{sL1}, 16
        v_lshl_add_u32 v{CW}, v1, 4, s{sT1}''')
        A(f'''v_lshlrev_b32 v{t+2}, 1, v1
        s_add_u32 s{sT1}, s{sT0}, {2*575}
        v_sub_u32 v{EX}, s{sT1}, v{t+2}
        v_lshlrev_b32 v{t+2}, 2, v1
        s_add_u32 s{sT1}, s{sT0}, {2*510}
        v_sub_u32 v{EX+1}, s{sT1}, v{t+2}
        v_and_b32 v{t+2}, 1, v1
        v_cmp_eq_u32 vcc, 0, v{t+2}
        v_mov_b32 v{t+2}, 0x05040504
        v_mov_b32 v{t+3}, 0x01000504
        v_mov_b32 v{t+4}, 0x01000100
        v_cndmask_b32 v{SEL}, v{t+3}, v{t+2}, vcc
        v_cndmask_b32 v{SEL+1}, v{t+4}, v{t+3}, vcc
        v_lshlrev_b32 v{t+2}, 3, v1
        s_sub_u32 s{sT1}, s{sT0}, 0x8500''')
        for j in range(9):
            A(f'''v_sub_u32 v{t+3}, {511-j}, v{t+2}
            v_cvt_f32_i32 v{t+4}, v{t+3}
            v_cmp_gt_i32 vcc, 256, v{t+3}
            v_cvt_pk_bf16_f32 v{t+4}, v{t+4}, 0
            v_lshl_add_u32 v{t+4}, v{t+4}, 1, s{sT1}''')
            if j == 8: A(f'v_min_u32 v{t+3}, 768, v{t+3}')
            A(f'''v_lshl_add_u32 v{t+3}, v{t+3}, 1, s{sT0}
            v_cndmask_b32 v{E3+j}, v{t+4}, v{t+3}, vcc''')
        A(f'''v_mov_b32 v{t+4}, 0
        v_mov_b32 v{t+5}, 0
        v_min_u32 v{t+2}, 59, v1
        v_lshl_add_u32 v{t+2}, v{t+2}, 3, s{sL2}
        ds_write_b64 v{t+2}, {vp(t+4)} offset:{L_U}
        v_mov_b32 v{t+2}, s{sT0}
        ds_write_b32 v{t+2}, v{t+4} offset:1536
        s_mov_b32 m0, s{sL1}
        v_mov_b32 v{t+2}, 0x3f80
        ds_write_addtid_b32 v{t+2} offset:{16*KST}''')
        ZT = 69
        A(f'''v_bfe_u32 v{t+2}, v1, 3, 2
        v_mul_u32_u24 v{t+3}, {CSTR}, v{t+2}
        v_lshrrev_b32 v{t+2}, 1, v{t+2}
        v_and_b32 v{t+4}, 7, v1
        v_add_u32 v{t+2}, v{t+2}, v{t+4}
        v_lshl_add_u32 v{t+2}, v{t+2}, 2, v{t+3}
        v_add_u32 v{ZT}, s{sL1}, v{t+2}''')
        l2e = math.log2(math.e); i2p = 1 / (2 * math.pi)
        for k, mlt in enumerate((1, 16, 256)):
            A(f's_mov_b32 s{sC+2*k}, {f32(l2e*mlt)}\ns_mov_b32 s{sC+2*k+1}, {f32(i2p*mlt)}')
        for k in range(4): A(f'v_mov_b32 v{XF+k}, -1')
        self.clear(Z2N, 2, 6, XF)
        self.stamp(1)
        DT = 124
        A.need(*[f'v{PR+k}' for k in range(6)])
        self.stamp(21)
        A(f'''v_lshlrev_b32 v{DT}, 16, v{PR+12}
        v_mul_f32 v{DT}, {f32(l2e)}, v{DT}
        v_exp_f32 v{DT}, v{DT}
        v_cvt_pk_bf16_f32 v{DT}, 0, v{DT}''')
        KACC = 112; FR = 192
        PA, PB, PC, T, E1, E16, COL, EO = 126, 128, 130, 132, 134, 136, 138, 140
        EE = 142
        M = 156
        R0, K0, G = 172, 176, 180
        kk = [0]
        def Ereg(k): return EE + (k - 2) if k % 2 == 0 else (E1 if k == 1 else EO)
        def put_row(row, src):
            r = K0 + kk[0] % 4; kk[0] += 1
            A(f'v_cvt_pk_bf16_f32 v{r}, v{src}, v{src+1}\nds_write_addtid_b32 v{r} offset:{row*KST}')
        def group(gm):
            if gm == 2: A.need(*[f'v{PR+6+k}' for k in range(6)])
            for k, dst in enumerate((PA, PA + 1, PB, PB + 1, PC, PC + 1)):
                if gm == 0: A(f'v_lshlrev_b32 v{dst}, 16, v{PR+k}')
                elif gm == 1: A(f'v_and_b32 v{dst}, 0xffff0000, v{PR+k}')
                else: A(f'v_lshlrev_b32 v{dst}, 16, v{PR+6+k}')
            A(f'v_pk_mul_f32 {vp(PA)}, {vp(PA)}, {vp(DT)} op_sel_hi:[1,0]')
            A(f'v_pk_mul_f32 {vp(PB)}, {vp(PB)}, {vp(DT)} op_sel_hi:[1,0]')
            for k in range(3): A(f'v_pk_mul_f32 {vp(G+2*k)}, {vp(PA)}, {sp(sC+2*k)}')
            self.cmul(COL, PC, PB, T, conj=True)
            dsts = (E1, E16, M)
            for k in range(3): A(f'v_fract_f32 v{G+2*k+1}, v{G+2*k+1}')
            for k in range(3):
                A(f'v_exp_f32 v{G+2*k}, v{G+2*k}\nv_cos_f32 v{dsts[k]}, v{G+2*k+1}\nv_sin_f32 v{dsts[k]+1}, v{G+2*k+1}')
            put_row(0, COL)
            for k in range(3):
                A(f'v_pk_mul_f32 {vp(dsts[k])}, {vp(dsts[k])}, {vp(G+2*k)} op_sel_hi:[1,0]' + (' neg_hi:[1,0]' if k == 1 else ''))
            for k in range(1, 16):
                self.cmul(COL, COL, E16, T); put_row(k, COL)
                if k > 1: self.cmul(Ereg(k), Ereg(k - 1), E1, T)
                put_row(16 + k, Ereg(k))
            Mr = lambda k: M + 2 * (k - 1)
            put_row(32, Mr(1))
            for k, a, b, row in ((2, 1, 1, 40), (3, 2, 1, 44), (4, 2, 2, 48), (5, 4, 1, 50), (6, 4, 2, 52), (7, 4, 3, 54), (8, 4, 4, 56)):
                self.cmul(Mr(k), Mr(a), Mr(b), T); put_row(row, Mr(k))
            for j in range(1, 8):
                self.cmul(R0, Mr(1), Ereg(2 * j), T); put_row(32 + j, R0)
            for a in range(2):
                for j in range(1, 4):
                    self.cmul(R0, Mr(2 + a), Ereg(4 * j), T); put_row(40 + 4*a + j, R0)
            for a in range(4):
                self.cmul(R0, Mr(4 + a), Ereg(8), T); put_row(49 + 2*a, R0)
        def greads():
            for ks in range(4):
                for tl in range(4): A(f'ds_read_b128 {vq(FR + 16*ks + 4*tl)}, v{SR} offset:{16*KST*tl + 64*ks}')
        def gmfma(gm):
            for ks in range(4):
                if gm < 2 and ks == 0: A.need(f'v[{FR}:{FR+63}]')
                elif gm == 2: A.need(f'v[{FR+16*ks}:{FR+16*ks+15}]')
                for tl in range(3):
                    c = '0' if gm == 0 and ks == 0 else vq(KACC + 4*tl)
                    A(f'v_mfma_f32_16x16x32_bf16 {vq(KACC+4*tl)}, {vq(FR+16*ks+4+4*tl)}, {vq(FR+16*ks)}, {c}')
        def xg_loads():
            for k in range(8):
                A(f's_add_u32 s{sRL}, s{sB0}, {4096*k}\nbuffer_load_dwordx4 {vq(XR+4*k)}, v{SA}, {srd(rWS)}, s{sRL} offen sc1')
        group(0); greads()
        for gm in (1, 2):
            g = A.capture(lambda: group(gm)); m = A.capture(lambda: gmfma(gm - 1))
            A.weave(g, m, start=25, end=75)
            greads()
        A(f'v_add_u32 v2, {TAGC}, v2\nv_lshlrev_b32 v{DSK}, 16, v{DSK}')
        xg_loads()
        gmfma(2)
        self.stamp(2)
        A(f'''s_mov_b64 exec, 1
        v_add_f32 v{KACC}, v{KACC}, v{DSK}
        s_mov_b64 exec, -1''')
        for tl in range(3):
            A(f'v_cvt_pk_bf16_f32 v{126+2*tl}, v{KACC+4*tl}, v{KACC+4*tl+1}\nv_cvt_pk_bf16_f32 v{127+2*tl}, v{KACC+4*tl+2}, v{KACC+4*tl+3}')
        A(f'''ds_write2_b32 v{TW+2}, v130, v131 offset0:0 offset1:16
        ds_write_b64 v{TW+1}, {vp(128)} offset:512
        ds_write_b64 v{TW}, {vp(126)}''')
        V = 132; EV = 160
        A(f'''ds_read_u16 v{V}, v{EX} offset:130
        ds_read_u16 v{V+1}, v{EX} offset:128
        ds_read_u16 v{V+2}, v{EX} offset:2
        ds_read_u16 v{V+3}, v{EX}
        ds_read_u16 v{V+4}, v{EX+1} offset:4
        ds_read_b32 v{V+5}, v{EX+1}''')
        for j in range(9): A(f'ds_read_u16 v{V+6+j}, v{E3+j}')
        A(f'''s_mov_b32 s{sC}, 0x05040504
        s_mov_b32 s{sC+1}, 0x01000100
        s_mov_b32 s{sC+2}, 0x03020302
        s_mov_b32 s{sC+3}, 0x01000302
        s_mov_b32 s{sC+4}, 0x03020504
        v_mov_b32 v{V+16}, 0
        v_add_u32 v{V+18}, {CSTR - 4}, v{CW}
        v_subrev_u32 v{V+19}, 4, v{CW}
        ds_write_b32 v{ZT}, v{V+16} offset:{16 + 4092}''')
        def put(k, e):
            A(f'ds_write_b128 v{CW}, {vq(e)} offset:{3*CSTR + 1024*k}')
            A(f'ds_write_b128 v{CW}, {vq(e+4)} offset:{2*CSTR + 1024*k}')
            if k: A(f'v_add_u32 v{V+18}, 1024, v{V+18}\nv_add_u32 v{V+19}, 1024, v{V+19}')
            A(f'ds_write2_b32 v{V+18}, v{e}, v{e+1} offset0:0 offset1:1\nds_write2_b32 v{V+18}, v{e+2}, v{e+3} offset0:2 offset1:3')
            A(f'ds_write2_b32 v{V+19}, v{e+4}, v{e+5} offset0:0 offset1:1\nds_write2_b32 v{V+19}, v{e+6}, v{e+7} offset0:2 offset1:3')
        for k in range(2):
            a, b, e = V + 2*k, V + 2*k + 1, EV + 8*k
            sels = [f's{sC}', f'v{SEL}', f's{sC+1}', f's{sC+1}', f's{sC}', f'v{SEL+1}', f's{sC+1}', f's{sC+1}']
            for n in range(8): A(f'v_perm_b32 v{e+n}, v{a}, v{b}, {sels[n]}')
            put(k, e)
        a, b, e = V + 4, V + 5, EV + 16
        sels = [sC, sC+2, sC+3, sC+1, sC+4, sC+2, sC+1, sC+1]
        A.need(f'v[{V}:{V+14}]')
        for n in range(8): A(f'v_perm_b32 v{e+n}, v{a}, v{b}, s{sels[n]}')
        put(2, e)
        e = EV + 24
        for n in range(4):
            A(f'v_lshl_or_b32 v{e+n}, v{V+6+2*n+1}, 16, v{V+6+2*n}\nv_lshl_or_b32 v{e+4+n}, v{V+6+2*n+2}, 16, v{V+6+2*n+1}')
        put(3, e)
        self.stamp(3)
        self.tag_check('xg', [XR + 4*k + 3 for k in range(8)], V, xg_loads)
        self.stamp(4)
        self.wsp_touch(70)
        self.wsp_dma(0)
        RS, NM = 132, 140
        for k in range(8): A(f'v_and_b32 v{RS+k}, 0xffff0000, v{XR+4*k+2}')
        for k in range(8): A(f'v_rcp_f32 v{RS+k}, v{RS+k}')
        for k in range(8): A(f'v_lshlrev_b32 v{NM+k}, 16, v{XR+4*k+2}')
        for n in range(4): A(f'v_pk_mul_f32 {vp(NM+2*n)}, {vp(NM+2*n)}, {vp(RS+2*n)} neg_lo:[1,0] neg_hi:[1,0]')
        U = 148
        A(f'v_add_u32 v{V+40}, {2*R2S}, v{UW}')
        for c in range(4):
            for k in range(8):
                src = XR + 4*k + (c >> 1); dst = XF + 8*c + k
                A(f'v_lshlrev_b32 v{dst}, 16, v{src}' if c % 2 == 0 else f'v_and_b32 v{dst}, 0xffff0000, v{src}')
            for n in range(4): A(f'v_pk_fma_f32 {vp(U+2*n)}, {vp(XF+8*c+2*n)}, {vp(RS+2*n)}, {vp(NM+2*n)}')
            for n in range(4): A(f'v_cvt_pk_bf16_f32 v{U+8+n}, v{U+2*n}, v{U+2*n+1}')
            ad = UW if c < 2 else V + 40; o = (c & 1) * (R2S // 256)
            A(f'ds_write2st64_b32 v{ad}, v{U+8}, v{U+9} offset0:{o} offset1:{o+4}\nds_write2st64_b32 v{ad}, v{U+10}, v{U+11} offset0:{o+8} offset1:{o+12}')
        ACC = 36; F0 = 128
        def fa(s, q): return F0 + 64*(1 - s) + 4*q
        def fb(s, gmm): return F0 + 64*(1 - s) + 32 + 4*gmm
        def aread(rho, q):
            off = 64 * (63 - (8*q + rho)); s = rho & 1
            A(f'ds_read_b64 {vp(fa(s,q))}, v{CA} offset:{off}\nds_read_b64 {vp(fa(s,q)+2)}, v{CA} offset:{off+8}')
        def bread(rho, q): A(f'ds_read_b128 {vq(fb(rho & 1,q))}, v{CB} offset:{448 - 64*rho + 512*q}')
        def abreads(rho):
            for q in range(8): bread(rho, q); aread(rho, q)
        def mf(rho):
            s = rho & 1; seen = set()
            for mx in range(8):
                prs = [(mx, k) for k in range(mx + 1)] + [(k, mx) for k in range(mx)]
                first = True
                for q, gmm in prs:
                    be = q + gmm
                    if be > 7: continue
                    if first: A.need(vq(fa(s, mx)), vq(fb(s, mx))); first = False
                    c = '0' if rho == 0 and be not in seen else vq(ACC + 4*be)
                    seen.add(be)
                    A(f'v_mfma_f32_16x16x32_bf16 {vq(ACC+4*be)}, {vq(fa(s,q))}, {vq(fb(s,gmm))}, {c}')
        for q in range(8): aread(0, q)
        self.wsp_dma(1)
        A('s_waitcnt lgkmcnt(0)\ns_barrier')
        for q in range(8): bread(0, q)
        self.wz2_base()
        self.stamp(5)
        for rho in range(8):
            def fill():
                if rho == 0: self.wsp_read(0)
                if rho + 1 < 8: abreads(rho + 1)
                if rho + 2 < 8:
                    A.waittag(f'wspr{rho}')
                    self.wsp_dma(rho + 2)
                if rho == 4: self.flag_load(FD)
                if rho == 6:
                    self.tag_check('flgc', [FD, FD + 1], 126, lambda: self.flag_load(FD))
                    A.waittag('wspr6'); self.wz2_dma(0); self.cs_dma(126)
                if rho == 7:
                    A.waittag('wspr7'); self.wz2_dma(1)
                if rho + 1 < 8: self.wsp_read(rho + 1)
            m = A.capture(lambda: mf(rho)); f = A.capture(fill)
            A.weave(m, f, start=1 if rho < 7 else 8)
        self.stamp(6)
        for be in range(8): A(f'ds_write_b128 v{YW}, {vq(ACC+4*be)} offset:{1024*be}')
        A(f'v_add_u32 v{YW}, {2*R2S}, v{YR}')
        A('s_waitcnt lgkmcnt(0)\ns_barrier')
        Y = 128
        for n in range(4):
            for c in range(4):
                A(f'ds_read_b64 {vp(Y+8*c+2*n)}, v{YR if c < 2 else YW} offset:{(c & 1)*R2S + 2048*n}')
        O = 160
        for n in range(4):
            A.need(*[vp(Y+8*c+2*n) for c in range(4)])
            for c in range(4): A(f'v_pk_add_f32 {vp(Y+8*c+2*n)}, {vp(Y+8*c+2*n)}, {vp(XF+8*c+2*n)}')
            for b in range(2):
                for cp in range(2): A(f'v_cvt_pk_bf16_f32 v{O+4*n+2*b+cp}, v{Y+16*cp+2*n+b}, v{Y+16*cp+8+2*n+b}')
            A(f'buffer_store_dwordx4 {vq(O+4*n)}, v{SA}, {srd(rWS)}, s79 offen sc1')
            if n < 3: A(f's_add_u32 s79, s79, 4096')
        self.stamp(22)
        self.wz2_dma(2, 3)
        self.stamp(7)
        A('s_branch L_join')

    def helper_role(self):
        A = self.A
        A.reset(); A.label('L_helper')
        t = 112; D = 128
        VT16 = self.VT16
        sTK, sTB, sTA, sTN = 82, 83, 84, 85
        A(f'''v_mov_b32 v{t}, 0
        buffer_load_dword v2, v{t}, {srd(rWS)}, 0 offen sc1
        v_lshlrev_b32 v{VT16}, 4, v0
        s_cmp_ge_u32 s{sIDX}, 8
        s_cbranch_scc1 L_nox''')
        A(f'''s_lshl_b32 s{sT0}, s{sXC}, 3
        s_add_u32 s{sT2}, s{sT0}, s{sIDX}
        s_lshl_b32 s{sT0}, s{sT2}, 5
        s_lshr_b32 s{sT1}, s{sW}, 1
        s_lshl_b32 s{sT1}, s{sT1}, 4
        s_add_u32 s{sT0}, s{sT0}, s{sT1}
        s_and_b32 s{sT1}, s{sW}, 1
        s_add_u32 s{sT0}, s{sT0}, s{sT1}
        s_mul_i32 s{sOFF}, s{sT0}, 1280
        v_lshrrev_b32 v{t}, 3, v1
        v_and_b32 v{t+2}, 7, v1
        v_xor_b32 v{t+3}, v{t+2}, v{t}
        v_mul_u32_u24 v{t+1}, 2560, v{t}
        v_lshl_add_u32 v{t+1}, v{t+3}, 4, v{t+1}''')
        for n in range(10):
            A(f's_add_u32 m0, s{sL2}, {1024*n - 128*n}\ns_nop 0\nbuffer_load_dwordx4 v{t+1}, {srd(rX)}, s{sOFF} offen offset:{128*n} lds', tag='x')
        A.label('L_nox')
        A(f'''v_lshrrev_b32 v{t+4}, 2, v1
        v_and_b32 v{t+5}, 3, v1
        v_lshrrev_b32 v{t+6}, 1, v{t+4}
        v_and_b32 v{t+6}, 2, v{t+6}
        v_xor_b32 v{t+5}, v{t+5}, v{t+6}
        v_lshlrev_b32 v{t+5}, 4, v{t+5}
        s_cmp_lt_u32 s{sIDX}, 6
        s_cbranch_scc1 L_rawo
        s_mul_i32 s{sTK}, s{sXC}, 6
        s_add_u32 s{sTK}, s{sTK}, s{sIDX}
        s_sub_u32 s{sTK}, s{sTK}, 6
        s_lshl_b32 s{sT0}, s{sTK}, 6
        s_mul_i32 s{sOFF}, s{sW}, {160*3072}
        s_add_u32 s{sOFF}, s{sOFF}, s{sT0}
        v_mul_u32_u24 v{t+6}, 3072, v{t+4}
        v_add_u32 v{t+6}, v{t+6}, v{t+5}''')
        for u in range(10):
            A(f's_add_u32 m0, s{sL1}, {1024*u}')
            if u: A(f's_add_u32 s{sOFF}, s{sOFF}, {16*3072}')
            A(f'buffer_load_dwordx4 v{t+6}, {srd(rWIN)}, s{sOFF} offen lds', tag='raw')
        A('s_branch L_rawd')
        A.label('L_rawo')
        A(f'''s_mul_i32 s{sTK}, s{sXC}, 5
        s_min_u32 s{sT0}, s{sIDX}, 4
        s_add_u32 s{sTK}, s{sTK}, s{sT0}
        s_lshr_b32 s{sT0}, s{sTK}, 1
        s_lshl_b32 s{sT0}, s{sT0}, 6
        s_and_b32 s{sT1}, s{sTK}, 1
        s_lshl_b32 s{sT1}, s{sT1}, 2
        s_add_u32 s{sTN}, s{sT1}, s{sW}
        s_mul_i32 s{sOFF}, s{sTN}, {96*1280}
        s_add_u32 s{sOFF}, s{sOFF}, s{sT0}
        v_mul_u32_u24 v{t+6}, 1280, v{t+4}
        v_add_u32 v{t+6}, v{t+6}, v{t+5}''')
        for u in range(6):
            A(f's_add_u32 m0, s{sL1}, {1024*u}')
            if u: A(f's_add_u32 s{sOFF}, s{sOFF}, {16*1280}')
            A(f'buffer_load_dwordx4 v{t+6}, {srd(rWOUT)}, s{sOFF} offen lds')
        A.label('L_rawd')
        A.reset()
        self.common_consts(t + 8)
        A(f's_cmp_ge_u32 s{sIDX}, 8\ns_cbranch_scc1 L_nostat')
        A(f'''v_lshlrev_b32 v{t+1}, 7, v{t+2}
        v_lshl_add_u32 v{t+1}, v{t+3}, 4, v{t+1}
        v_add_u32 v{t+1}, s{sL2}, v{t+1}
        v_lshlrev_b32 v{t+8}, 16, v{t}
        v_lshl_add_u32 v{t+8}, v{t+2}, 4, v{t+8}
        s_lshr_b32 s{sT0}, s{sT2}, 4
        s_lshl_b32 s{sT0}, s{sT0}, 13
        s_and_b32 s{sT1}, s{sT2}, 15
        s_lshl_b32 s{sT1}, s{sT1}, 8
        s_add_u32 s{sT0}, s{sT0}, s{sT1}
        s_lshr_b32 s{sT1}, s{sW}, 1
        s_lshl_b32 s{sT1}, s{sT1}, 7
        s_add_u32 s{sT0}, s{sT0}, s{sT1}
        s_and_b32 s{sT1}, s{sW}, 1
        s_lshl_b32 s{sT1}, s{sT1}, 12
        s_add_u32 s{sT0}, s{sT0}, s{sT1}
        s_add_u32 s{sOFF}, s{sT0}, {XG}
        v_mov_b32 v{t+10}, 0
        v_mov_b32 v{t+11}, 0
        v_mov_b32 v{t+12}, 0
        v_mov_b32 v{t+13}, 0
        s_waitcnt vmcnt(6)''')
        self.stamp(23)
        for n in range(10):
            for e in range(2): A(f'ds_read_b64 {vp(D+8*n+4*e)}, v{t+1} offset:{1024*n + 8*e}')
        A(f'v_add_u32 v{t+15}, {TAGC}, v2')
        for k in range(20):
            if k % 4 == 0: A.need(*[vp(D+4*q) for q in range(k, k + 4)])
            for e in range(2):
                A(f'v_dot2_f32_bf16 v{t+10+e}, v{D+4*k+e}, s{sONES}, v{t+10+e}\nv_dot2_f32_bf16 v{t+12+e}, v{D+4*k+e}, v{D+4*k+e}, v{t+12+e}')
        S = t + 10
        A(f'v_add_f32 v{S}, v{S}, v{S+1}\nv_add_f32 v{S+1}, v{S+2}, v{S+3}')
        A(f'v_add_f32_dpp v{S}, v{S}, v{S} row_ror:8 row_mask:0xf bank_mask:0xf\nv_add_f32_dpp v{S+1}, v{S+1}, v{S+1} row_ror:8 row_mask:0xf bank_mask:0xf')
        for sw in ('16', '32'):
            A(f'''v_mov_b64 {vp(S+2)}, {vp(S)}
            v_permlane{sw}_swap_b32 v{S}, v{S+2}
            v_permlane{sw}_swap_b32 v{S+1}, v{S+3}
            v_pk_add_f32 {vp(S)}, {vp(S)}, {vp(S+2)}''')
        A(f'''v_mul_f32 v{S}, {f32(1/640)}, v{S}
        v_mul_f32 v{S+1}, {f32(1/640)}, v{S+1}
        v_fma_f32 v{S+1}, -v{S}, v{S}, v{S+1}
        v_max_f32 v{S+1}, 0, v{S+1}
        v_cvt_pk_bf16_f32 v{S+1}, 0, v{S+1}
        v_add_f32 v{S+1}, {f32(1e-5)}, v{S+1}
        v_cvt_pk_bf16_f32 v{S+1}, 0, v{S+1}
        v_sqrt_f32 v{S+1}, v{S+1}
        v_cvt_pk_bf16_f32 v{t+14}, v{S}, v{S+1}''')
        self.stamp(25)
        for k in range(20):
            A(f'v_mov_b64 {vp(D+4*k+2)}, {vp(t+14)}')
            A(f'buffer_store_dwordx4 {vq(D+4*k)}, v{t+8}, {srd(rWS)}, s{sOFF} offen sc1')
            if k < 19: A(f's_add_u32 s{sOFF}, s{sOFF}, {32768 if k % 2 == 0 else 15*32768}')
        A.label('L_nostat')
        A.reset()
        self.stamp(1)
        F = 8; CA_ = 48; ON = 56
        A(f'''v_lshlrev_b32 v{t}, 6, v{t+4}
        v_and_b32 v{t+1}, 3, v1
        v_lshl_add_u32 v{t}, v{t+1}, 3, v{t}
        v_bfe_u32 v{t+1}, v1, 4, 1
        v_lshl_add_u32 v{t}, v{t+1}, 5, v{t}
        v_add_u32 v{t}, s{sL1}, v{t}
        v_xor_b32 v{t+1}, 32, v{t}
        v_mov_b32 v4, -1
        v_mov_b32 v5, -1
        v_mov_b32 v6, -1
        v_mov_b32 v7, -1
        s_waitcnt vmcnt(20)
        s_cmp_lt_u32 s{sIDX}, 8
        s_cbranch_scc1 L_w1
        s_waitcnt vmcnt(0)''')
        A.label('L_w1')
        A(f'v_add_u32 v2, {TAGC}, v2')
        for k in range(4): A(f'v_mov_b32 v{ON+k}, s{sONES}')
        for ks in range(5):
            for c in range(2):
                for hh in range(2): A(f'ds_read_b64_tr_b16 {vp(F + 8*ks + 4*c + 2*hh)}, v{t+c} offset:{2048*ks + 1024*hh}')
        A(f's_cmp_lt_u32 s{sIDX}, 6\ns_cbranch_scc1 L_wo')
        A.save('w')
        A(f'''s_mul_i32 s{sT0}, s{sTK}, 21846
        s_lshr_b32 s{sT0}, s{sT0}, 16
        s_mul_i32 s{sT1}, s{sT0}, {122880 - 3*2048}
        s_lshl_b32 s{sT0}, s{sTK}, 11
        s_add_u32 s{sT1}, s{sT1}, s{sT0}
        s_mul_i32 s{sT0}, s{sW}, 30720
        s_add_u32 s{sT1}, s{sT1}, s{sT0}
        s_add_u32 s{sOFF}, s{sT1}, {WIT}''')
        for ks in range(5):
            for c in range(2):
                A(f'buffer_store_dwordx4 {vq(F + 8*ks + 4*c)}, v{self.VL16}, {srd(rWS)}, s{sOFF} offen offset:{1024*c} sc1')
                A(f'v_mfma_f32_16x16x32_bf16 {vq(CA_+4*c)}, {vq(ON)}, {vq(F + 8*ks + 4*c)}, {"0" if ks == 0 else vq(CA_+4*c)}')
            if ks < 4: A(f's_add_u32 s{sOFF}, s{sOFF}, 6144')
        A(f'''v_and_b32 v{t}, 15, v1
        s_lshl_b32 s{sT0}, s{sW}, 7
        s_add_u32 s{sT0}, s{sT0}, {R2B + 20992}
        v_lshl_add_u32 v{t}, v{t}, 2, s{sT0}
        ds_write2_b32 v{t}, v{CA_}, v{CA_+4} offset0:0 offset1:16
        s_branch L_wd''')
        A.label('L_wo')
        A.restore('w')
        A(f's_cmp_eq_u32 s{sIDX}, 5\ns_cbranch_scc1 L_wd')
        for c in range(2):
            A(f'''s_and_b32 s{sT0}, s{sTK}, 0xfe
            s_add_u32 s{sT0}, s{sT0}, {c}
            s_mul_i32 s{sT1}, s{sT0}, 13108
            s_lshr_b32 s{sT1}, s{sT1}, 16
            s_mul_i32 s{sT1}, s{sT1}, {122880 - 5*1024}
            s_lshl_b32 s{sT0}, s{sT0}, 10
            s_add_u32 s{sT1}, s{sT1}, s{sT0}
            s_mul_i32 s{sT0}, s{sTN}, 15360
            s_add_u32 s{sT1}, s{sT1}, s{sT0}
            s_add_u32 s{sOFF}, s{sT1}, {WOT}''')
            for ks in range(3):
                A(f'buffer_store_dwordx4 {vq(F + 8*ks + 4*c)}, v{self.VL16}, {srd(rWS)}, s{sOFF} offen sc1')
                if ks < 2: A(f's_add_u32 s{sOFF}, s{sOFF}, 5120')
        A.label('L_wd')
        A.reset()
        A(f's_mul_i32 s{sT0}, s{sXC}, 12\ns_add_u32 s{sT2}, s{sT0}, s{sIDX}')
        self.clear(CLR, sT2, 7, 4)
        self.clear(Z2N, 2, 6, 4)
        self.stamp(21)
        A('s_waitcnt vmcnt(0) lgkmcnt(0)\ns_barrier')
        self.stamp(22)
        A(f'''s_cmp_lg_u32 s{sW}, 0
        s_cbranch_scc1 L_nofl
        s_cmp_lt_u32 s{sIDX}, 6
        s_cbranch_scc1 L_nocs
        v_and_b32 v{t}, 31, v1
        v_lshlrev_b32 v{t}, 2, v{t}
        v_add_u32 v{t+1}, {R2B + 20992}, v{t}
        ds_read2_b32 {vp(D)}, v{t+1} offset0:0 offset1:32
        ds_read2_b32 {vp(D+2)}, v{t+1} offset0:64 offset1:96
        s_lshl_b32 s{sT0}, s{sTK}, 7
        s_add_u32 s{sT0}, s{sT0}, {CS}
        v_pk_add_f32 {vp(D)}, {vp(D)}, {vp(D+2)}
        v_add_f32 v{D}, v{D}, v{D+1}
        buffer_store_dword v{D}, v{t}, {srd(rWS)}, s{sT0} offen sc1
        s_waitcnt vmcnt(0)''')
        A.label('L_nocs')
        A(f'''s_lshl_b32 s{sT0}, s{sT2}, 6
        s_add_u32 s{sT0}, s{sT0}, {FLG}
        v_mov_b32 v{t}, 0
        s_mov_b64 exec, 1
        buffer_store_dword v2, v{t}, {srd(rWS)}, s{sT0} offen sc1
        s_mov_b64 exec, -1''')
        A.label('L_nofl')
        self.stamp(2)
        self.wsp_touch(t)
        self.wsp_dma(0); self.wsp_dma(1)
        for hb in range(8):
            self.wsp_read(hb)
            if hb + 2 < 8:
                A.waittag(f'wspr{hb}')
                self.wsp_dma(hb + 2)
        self.flag_load(4)
        A('s_waitcnt lgkmcnt(0)')
        self.stamp(3)
        self.tag_check('flgh', [4, 5], 126, lambda: self.flag_load(4), sleep=8)
        A(f'''v_lshlrev_b32 v{t}, 7, v0
        s_and_b32 s{sT0}, s{sXC}, 1
        s_mul_i32 s{sT0}, s{sT0}, {4*122880}
        s_mul_i32 s{sT1}, s{sIDX}, 40960
        s_add_u32 s{sT0}, s{sT0}, s{sT1}
        s_add_u32 s{sOFF}, s{sT0}, {WIT + 8*122880}
        buffer_load_dword v{t+1}, v{t}, {srd(rWS)}, s{sOFF} offen sc1
        s_add_u32 s{sOFF}, s{sOFF}, 8192
        buffer_load_dword v{t+1}, v{t}, {srd(rWS)}, s{sOFF} offen sc1''')
        self.wz2_base()
        self.wz2_dma(0); self.wz2_dma(1); self.cs_dma(126); self.wz2_dma(2, 3)
        A(f'''s_and_b32 s{sT0}, s{sXC}, 1
        s_mul_i32 s{sT0}, s{sT0}, {4*122880}
        s_add_u32 s{sT0}, s{sT0}, s{sT1}
        s_add_u32 s{sOFF}, s{sT0}, {WIT}
        buffer_load_dword v{t+1}, v{t}, {srd(rWS)}, s{sOFF} offen sc1
        s_add_u32 s{sOFF}, s{sOFF}, 8192
        buffer_load_dword v{t+1}, v{t}, {srd(rWS)}, s{sOFF} offen sc1
        s_lshl_b32 s{sT1}, s{sT1}, 1
        s_add_u32 s{sOFF}, s{sT1}, {WOT}''')
        for k in range(3):
            A(f'buffer_load_dword v{t+1}, v{t}, {srd(rWS)}, s{sOFF} offen sc1')
            if k < 2: A(f's_add_u32 s{sOFF}, s{sOFF}, {32768 if k == 0 else 16384}')
        self.stamp(7)

    def build(self):
        A = self.A
        self.prologue()
        self.role = 'conv'; self.conv_role()
        self.role = 'help'; self.helper_role()
        self.role = 'all'
        A.label('L_join')
        A.reset()
        from gen2 import rest
        rest(self)
        A.label('L_end')
        self.stamp(24)
        self.stamp_out()
        A.label('L_exit')
        A('s_endpgm')
        self.emit_stubs()
        body = A.finish()
        hdr = open(f'cdna_kernels/{NAME}.s.ref').read().split('; Override launch')[0]
        txt = hdr + f'''; @launch grid=(256,1,1) block=(256,1,1) lds=163840
.amdgcn_target "amdgcn-amd-amdhsa--gfx950"
.text
.globl {NAME}_kernel
.p2align 8
.type {NAME}_kernel,@function
{NAME}_kernel:
{body}.section .rodata,"a"
.p2align 6
.amdhsa_kernel {NAME}_kernel
  .amdhsa_next_free_vgpr 512
  .amdhsa_next_free_sgpr 100
  .amdhsa_accum_offset 256
  .amdhsa_group_segment_fixed_size 0
  .amdhsa_kernarg_size 136
  .amdhsa_user_sgpr_count 2
  .amdhsa_user_sgpr_kernarg_segment_ptr 1
  .amdhsa_system_sgpr_workgroup_id_x 1
.end_amdhsa_kernel
'''
        return txt

if __name__ == '__main__':
    import argparse
    ap = argparse.ArgumentParser()
    ap.add_argument('-o', default=f'cdna_kernels/{NAME}.s')
    ap.add_argument('--stop', type=int, default=99)
    ap.add_argument('--stamps', action='store_true')
    ap.add_argument('--dump', action='store_true')
    ap.add_argument('--amp')
    a = ap.parse_args()
    g = Gen(a.stop, a.stamps, a.dump, a.amp)
    open(a.o, 'w').write(g.build())
    print(g.A.stats)
```

```python
from mb import *
import os, time
def gen(name, nrd=16, nwr=0, rmod='', touch=False, nwg=256):
    o = []; A = o.append
    A('; @launch grid=(256,1,1) block=(256,1,1) lds=131072')
    A('.amdgcn_target "amdgcn-amd-amdhsa--gfx950"\n.text\n.globl mb_kernel\n.p2align 8\n.type mb_kernel,@function\nmb_kernel:')
    A(f'''s_load_dwordx4 s[4:7], s[0:1], 0
    s_load_dwordx2 s[20:21], s[0:1], 16
    v_lshrrev_b32 v6, 6, v0
    v_and_b32 v1, 63, v0
    v_readfirstlane_b32 s23, v6
    s_waitcnt lgkmcnt(0)
    s_cmp_ge_u32 s2, {nwg}
    s_cbranch_scc1 L_end
    s_mov_b32 s8, s4
    s_mov_b32 s9, s5
    s_mov_b32 s10, 0x8000000
    s_mov_b32 s11, 0x20000
    s_mov_b32 s12, s6
    s_mov_b32 s13, s7
    s_mov_b32 s14, 0x8000000
    s_mov_b32 s15, 0x20000
    v_lshlrev_b32 v2, {7 if touch else 4}, v1
    v_lshlrev_b32 v4, 4, v1
    s_lshl_b32 s24, s2, 2
    s_add_u32 s24, s24, s23
    s_mul_i32 s25, s24, {max(nrd,1) * (8192 if touch else 1024)}
    s_mul_i32 s26, s24, {max(nwr,1) * 1024}
    s_barrier
    s_memrealtime s[40:41]
    s_waitcnt lgkmcnt(0)
    ''')
    n = max(nrd, nwr)
    for k in range(n):
        if k < nrd:
            if touch: A(f'buffer_load_dword v{20+k%32}, v2, s[8:11], s25 offen {rmod}\ns_add_u32 s25, s25, 8192')
            else: A(f'buffer_load_dwordx4 v[{20+4*(k%32)}:{23+4*(k%32)}], v2, s[8:11], s25 offen {rmod}\ns_add_u32 s25, s25, 1024')
        if k < nwr: A(f'buffer_store_dwordx4 v[8:11], v4, s[12:15], s26 offen sc1\ns_add_u32 s26, s26, 1024')
        if k % 16 == 15: A('s_waitcnt vmcnt(30)')
    A('''s_waitcnt vmcnt(0)
    s_memrealtime s[42:43]
    s_waitcnt lgkmcnt(0)
    s_sub_u32 s42, s42, s40
    v_mov_b32 v3, s42
    s_lshl_b32 s24, s24, 2
    v_mov_b32 v5, s24
    global_store_dword v5, v3, s[20:21]
    s_waitcnt vmcnt(0)
L_end:
    s_endpgm
.section .rodata,"a"
.p2align 6
.amdhsa_kernel mb_kernel
  .amdhsa_next_free_vgpr 512
  .amdhsa_next_free_sgpr 96
  .amdhsa_accum_offset 256
  .amdhsa_group_segment_fixed_size 0
  .amdhsa_kernarg_size 24
  .amdhsa_user_sgpr_count 2
  .amdhsa_user_sgpr_kernarg_segment_ptr 1
  .amdhsa_system_sgpr_workgroup_id_x 1
.end_amdhsa_kernel
''')
    open(name, 'w').write('\n'.join(o))
V = {
 'r16': dict(), 'r16nt': dict(rmod='nt'), 'w16': dict(nrd=0, nwr=16), 'r16w16': dict(nwr=16), 'r16nt_w16': dict(nwr=16, rmod='nt'),
 'r32_32wg': dict(nrd=32, nwg=32), 'r32nt_32wg': dict(nrd=32, nwg=32, rmod='nt'), 'r64_32wg': dict(nrd=64, nwg=32), 'r64nt_32wg': dict(nrd=64, nwg=32, rmod='nt'),
 'r64nt_96wg': dict(nrd=64, nwg=96, rmod='nt'), 'r64_96wg': dict(nrd=64, nwg=96),
 't4_32wg': dict(nrd=4, nwg=32, touch=True), 't4nt_32wg': dict(nrd=4, nwg=32, touch=True, rmod='nt'), 't8_32wg': dict(nrd=8, nwg=32, touch=True), 't8nt_32wg': dict(nrd=8, nwg=32, touch=True, rmod='nt'),
 't2_256': dict(nrd=2, touch=True), 't2nt_256': dict(nrd=2, touch=True, rmod='nt'), 't5_96': dict(nrd=5, touch=True, nwg=96), 't5nt_96': dict(nrd=5, touch=True, nwg=96, rmod='nt'),
}
gpu = os.path.exists('/dev/kfd')
if gpu:
    src = cl.DeviceBuffer(128 << 20); dst = cl.DeviceBuffer(128 << 20); res = cl.DeviceBuffer(1 << 20); buf2 = cl.DeviceBuffer(512 << 20)
for nm, kw in V.items():
    gen('mb_mix.s', **kw)
    co = build('mb_mix.s', 'mb_kernel', 3)
    if not gpu: continue
    k = cl.AsmKernel(co, 'mb_kernel')
    s = ''
    for mode in ('x', 'srcwarm', 'bothwarm', 'cold'):
        cl.hip_check(cl._hip.hipMemset(buf2._ptr, 0, 512 << 20))
        if mode in ('srcwarm', 'bothwarm'): cl.hip_check(cl._hip.hipMemset(src._ptr, 0, 32 << 20))
        if mode == 'bothwarm': cl.hip_check(cl._hip.hipMemset(dst._ptr, 0, 32 << 20))
        k.launch((256,1,1), (256,1,1), cl.pack_ptr_kernargs([src.ptr, dst.ptr, res.ptr]), shared_mem=131072); sync()
        r = res.to_numpy(np.uint32, (1024,))[:kw.get('nwg', 256) * 4].astype(np.int64) * 10
        if mode != 'x': s += f' {mode}: {np.median(r):.0f}/{r.max():.0f}'
    print(f'{nm:14s}{s}')
    k.unload()
```

```python
from mb import *
def make_reader():
    src = '''; @launch grid=(2048,1,1) block=(256,1,1) lds=0
.amdgcn_target "amdgcn-amd-amdhsa--gfx950"
.text
.globl rd_kernel
.p2align 8
.type rd_kernel,@function
rd_kernel:
    s_load_dwordx2 s[4:5], s[0:1], 0
    s_waitcnt lgkmcnt(0)
    s_mov_b32 s8, s4
    s_mov_b32 s9, s5
    s_mov_b32 s10, 0x20000000
    s_mov_b32 s11, 0x20000
    v_lshlrev_b32 v2, 4, v0
    s_lshl_b32 s12, s2, 18
    s_mov_b32 s13, 16
L0:
    buffer_load_dwordx4 v[4:7], v2, s[8:11], s12 offen
    s_add_u32 s12, s12, 4096
    buffer_load_dwordx4 v[8:11], v2, s[8:11], s12 offen
    s_add_u32 s12, s12, 4096
    buffer_load_dwordx4 v[12:15], v2, s[8:11], s12 offen
    s_add_u32 s12, s12, 4096
    buffer_load_dwordx4 v[16:19], v2, s[8:11], s12 offen
    s_add_u32 s12, s12, 4096
    s_waitcnt vmcnt(0)
    s_sub_u32 s13, s13, 1
    s_cmp_lg_u32 s13, 0
    s_cbranch_scc1 L0
    s_endpgm
.section .rodata,"a"
.p2align 6
.amdhsa_kernel rd_kernel
  .amdhsa_next_free_vgpr 32
  .amdhsa_next_free_sgpr 32
  .amdhsa_accum_offset 32
  .amdhsa_group_segment_fixed_size 0
  .amdhsa_kernarg_size 8
  .amdhsa_user_sgpr_count 2
  .amdhsa_user_sgpr_kernarg_segment_ptr 1
  .amdhsa_system_sgpr_workgroup_id_x 1
.end_amdhsa_kernel
'''
    open('aux_rd.s', 'w').write(src)
    return build('aux_rd.s', 'rd_kernel', 1)
def make_icache():
    src = '''; @launch grid=(256,1,1) block=(256,1,1) lds=163840
.amdgcn_target "amdgcn-amd-amdhsa--gfx950"
.text
.globl ic_kernel
.p2align 8
.type ic_kernel,@function
ic_kernel:
.rept 20000
    v_fma_f32 v1, v2, v3, v1
.endr
    s_endpgm
.section .rodata,"a"
.p2align 6
.amdhsa_kernel ic_kernel
  .amdhsa_next_free_vgpr 512
  .amdhsa_next_free_sgpr 32
  .amdhsa_accum_offset 256
  .amdhsa_group_segment_fixed_size 0
  .amdhsa_kernarg_size 8
  .amdhsa_user_sgpr_count 2
  .amdhsa_user_sgpr_kernarg_segment_ptr 1
  .amdhsa_system_sgpr_workgroup_id_x 1
.end_amdhsa_kernel
'''
    open('aux_ic.s', 'w').write(src)
    return build('aux_ic.s', 'ic_kernel', 1)
if __name__ == '__main__':
    make_reader(); make_icache(); print('ok')
```

```python
from mb import *
import os, time
def gen(name, seg=128, order='k', rot=True, swz=True, touch=0, nwg=256, half=False, wrot=False, nww=0, nst=0, wmod='sc1', r4=False):
    o = []; A = o.append
    A('; @launch grid=(256,1,1) block=(256,1,1) lds=131072')
    A('.amdgcn_target "amdgcn-amd-amdhsa--gfx950"\n.text\n.globl mb_kernel\n.p2align 8\n.type mb_kernel,@function\nmb_kernel:')
    lpr = seg // 16; rows = 64 // lpr; sh = lpr.bit_length() - 1
    A(f'''s_load_dwordx4 s[4:7], s[0:1], 0
    v_lshrrev_b32 v6, 6, v0
    v_and_b32 v1, 63, v0
    v_readfirstlane_b32 s23, v6
    s_waitcnt lgkmcnt(0)
    s_mov_b32 s8, s4
    s_mov_b32 s9, s5
    s_mov_b32 s10, 0x8000000
    s_mov_b32 s11, 0x20000
    s_cmp_ge_u32 s2, {nwg}
    s_cbranch_scc1 L_wr
    s_and_b32 s30, s2, 7
    s_lshr_b32 s31, s2, 3
    s_lshr_b32 s30, s30, 1
    s_lshl_b32 s30, s30, 3
    s_and_b32 s32, s31, 7
    s_add_u32 s30, s30, s32      ; i
    s_lshl_b32 s33, s30, 18
    s_lshl_b32 s34, s23, 10
    s_add_u32 s33, s33, s34      ; base
    v_lshrrev_b32 v2, {sh}, v1
    v_and_b32 v3, {lpr-1}, v1
    ''')
    if swz: A('v_lshrrev_b32 v4, 1, v2\nv_and_b32 v4, 7, v4\nv_xor_b32 v3, v3, v4')
    A(f'''v_lshlrev_b32 v3, 4, v3
    v_lshl_add_u32 v2, v2, 12, v3
    s_lshl_b32 s35, s23, 15
    s_lshl_b32 s24, s2, 2
    s_add_u32 s24, s24, s23
    s_lshl_b32 s24, s24, 4
    s_mov_b32 s40, 0
    ''')
    if touch:
        A(f's_lshr_b32 s36, s31, 3\ns_lshl_b32 s36, s36, 16\ns_lshl_b32 s37, s30, 18\ns_add_u32 s36, s36, s37\nv_mul_u32_u24 v8, {touch}, v0')
        for k in range(65536 // (256 * touch)):
            A(f'buffer_load_dword v9, v8, s[8:11], s36 offen\ns_add_u32 s36, s36, {256*touch}')
        A('s_waitcnt vmcnt(0)\ns_sleep 127')
    A('s_mov_b32 s44, 0')
    if half and order == 'r': A('s_and_b32 s44, s2, 1\ns_lshl_b32 s44, s44, 17')
    if half and order == 'k': A(f's_and_b32 s45, s2, 1\ns_mul_i32 s45, s45, {1024//seg//2}\ns_add_u32 s30, s30, s45')
    if r4: A('s_lshr_b32 s45, s2, 6\ns_lshl_b32 s45, s45, 1\ns_and_b32 s46, s2, 1\ns_add_u32 s45, s45, s46\ns_add_u32 s30, s30, s45')
    if wrot: A('s_lshl_b32 s45, s23, 16\ns_add_u32 s44, s44, s45')
    A('L_round:\ns_barrier\ns_memtime s[50:51]\ns_waitcnt lgkmcnt(0)')
    nseg = 1024 // seg; nrg = 64 // rows
    seq = [(kp, rg) for kp in range(nseg) for rg in range(nrg)] if order == 'k' else [(kp, rg) for rg in range(nrg) for kp in range(nseg)]
    for n, (kp, rg) in enumerate(seq):
        if rot: A(f's_add_u32 s42, s30, {kp}\ns_and_b32 s42, s42, {nseg-1}\ns_mul_i32 s42, s42, {seg}')
        else: A(f's_mov_b32 s42, {kp*seg}')
        A(f's_add_u32 s43, s44, {rg*rows*4096}\ns_and_b32 s43, s43, 0x3ffff\ns_add_u32 s42, s42, s33\ns_add_u32 s42, s42, s43\ns_add_u32 m0, s35, {(n % 32)*1024}')
        if n >= 16: A('s_waitcnt vmcnt(15)')
        else: A('s_nop 0')
        A('buffer_load_dwordx4 v2, s[8:11], s42 offen lds')
    A('''s_waitcnt vmcnt(0)
    s_memtime s[52:53]
    s_waitcnt lgkmcnt(0)
    s_sub_u32 s52, s52, s50
    v_mov_b32 v10, s52
    s_lshl_b32 s41, s40, 2
    s_add_u32 s41, s41, s24
    v_mov_b32 v5, s41
    global_store_dword v5, v10, s[6:7]
    s_waitcnt vmcnt(0)
    s_add_u32 s40, s40, 1
    s_cmp_lt_u32 s40, 3
    s_cbranch_scc1 L_round
    s_endpgm
L_wr:''')
    A(f's_cmp_ge_u32 s2, {nwg + nww}\ns_cbranch_scc1 L_end\nv_lshlrev_b32 v2, 4, v0\ns_mul_i32 s30, s2, {max(nst,1)*4096}\ns_add_u32 s30, s30, 0x2000000')
    for k in range(nst): A(f'buffer_store_dwordx4 v[8:11], v2, s[8:11], s30 offen {wmod}\ns_add_u32 s30, s30, 4096')
    A('''s_waitcnt vmcnt(0)
L_end:
    s_endpgm
.section .rodata,"a"
.p2align 6
.amdhsa_kernel mb_kernel
  .amdhsa_next_free_vgpr 512
  .amdhsa_next_free_sgpr 96
  .amdhsa_accum_offset 256
  .amdhsa_group_segment_fixed_size 0
  .amdhsa_kernarg_size 16
  .amdhsa_user_sgpr_count 2
  .amdhsa_user_sgpr_kernarg_segment_ptr 1
  .amdhsa_system_sgpr_workgroup_id_x 1
.end_amdhsa_kernel
''')
    open(name, 'w').write('\n'.join(o))
V = {}
V['lead'] = dict(half=True, nwg=64, wrot=True)
V['lead_w8x44'] = dict(half=True, nwg=64, wrot=True, nww=8, nst=44)
V['lead_w32x20'] = dict(half=True, nwg=64, wrot=True, nww=32, nst=20)
V['lead_w32x44'] = dict(half=True, nwg=64, wrot=True, nww=32, nst=44)
V['lead_w192x7'] = dict(half=True, nwg=64, wrot=True, nww=192, nst=7)
V['lead_w32x44plain'] = dict(half=True, nwg=64, wrot=True, nww=32, nst=44, wmod='')
V['all_r8'] = dict(nwg=256, wrot=True, r4=True)
V['two_r8'] = dict(nwg=128, wrot=True, r4=True)
import aux_k
gpu = os.path.exists('/dev/kfd')
if gpu:
    src = cl.DeviceBuffer(128 << 20); res = cl.DeviceBuffer(1 << 20); buf2 = cl.DeviceBuffer(512 << 20)
    krd = cl.AsmKernel(aux_k.make_reader(), 'rd_kernel')
for nm, kw in V.items():
    gen('mb_pat.s', **kw)
    co = build('mb_pat.s', 'mb_kernel', 2)
    if not gpu: continue
    k = cl.AsmKernel(co, 'mb_kernel')
    s = ''
    for mode in ('x', 'warm', 'clean', 'clean'):
        cl.hip_check(cl._hip.hipMemset(buf2._ptr, 0, 512 << 20))
        cl.hip_check(cl._hip.hipMemset(src._ptr, 0, 16 << 20))
        cl.hip_check(cl._hip.hipMemset(buf2._ptr, 0, 48 << 20))
        if mode == 'clean':
            for _ in range(2): krd.launch((2048, 1, 1), (256, 1, 1), cl.pack_ptr_kernargs([buf2.ptr]))
        k.launch((256,1,1), (256,1,1), cl.pack_ptr_kernargs([src.ptr, res.ptr]), shared_mem=131072); sync()
        r = res.to_numpy(np.uint32, (1024, 4)).astype(np.int64)[:kw['nwg']*4]
        if mode != 'x': s += ' | ' + ' '.join(f'{np.median(r[:, p]):.0f}/{r[:, p].max():.0f}' for p in range(2))
    print(f'{nm:16s}{s}')
    k.unload()
```
